```python
import torch

def _softmax(x, axis=-1):
    return torch.softmax(x, dim=axis)
def _gelu(x):
    return torch.nn.functional.gelu(x, approximate="tanh")
def _silu(x):
    return torch.nn.functional.silu(x)
def _sigmoid(x):
    return torch.sigmoid(x)
def _layernorm(x, axis=-1, eps=1e-5):
    m = x.mean(dim=axis, keepdim=True)
    v = x.var(dim=axis, keepdim=True, unbiased=False)
    return (x - m) / torch.sqrt(v + eps)
def _scatter_add(tgt, idx, src, axis=0):
    return tgt.clone().index_add_(axis, idx, src)
def _segment_sum(src, seg, n):
    out = torch.zeros((n,) + src.shape[1:], dtype=src.dtype)
    return out.index_add_(0, seg, src)
def _pad(x, pw):
    flat = tuple(v for pair in reversed(pw) for v in pair)
    return torch.nn.functional.pad(x, flat)

kernel_name = 'standalone__glu_gated_reglu__prompt'

def setup_inputs():

    _w = (lambda a: (lambda t: t.to(torch.bfloat16) if t.is_floating_point() else t)(torch.as_tensor(a)))
    B, S, D, F = 1, 2048, 576, 4608
    return {
        "x": _w((lambda *s: torch.randn(*s, dtype=torch.bfloat16) * 0.05)(B, S, D)),
        "W_gate": _w((lambda *s: torch.randn(*s, dtype=torch.bfloat16) * 0.05)(D, F) * (2.0 / D) ** 0.5),
        "W_up": _w((lambda *s: torch.randn(*s, dtype=torch.bfloat16) * 0.05)(D, F) * (2.0 / D) ** 0.5),
        "W_down": _w((lambda *s: torch.randn(*s, dtype=torch.bfloat16) * 0.05)(F, D) * (1.0 / F) ** 0.5),
    }

def reference(x, W_gate, W_up, W_down):
    gate = torch.einsum("bsd,df->bsf", x, W_gate)
    up = torch.einsum("bsd,df->bsf", x, W_up)
    gate = gate * (lambda x, dt: x.to(dt))(gate > 0, gate.dtype)
    h = gate * up
    return torch.einsum("bsf,fd->bsd", h, W_down)
```

```python
import sys, argparse

class G:
    def __init__(self):
        self.L = []; self.vm = []; self.lg = []
    def e(self, s): self.L.append("    " + s)
    def lab(self, s): self.L.append(s + ":")
    def c(self, s): self.L.append("    ; " + s)
    def vmem(self, s, tag): self.e(s); self.vm.append(tag)
    def lds(self, s, tag): self.e(s); self.lg.append(tag)
    def _cnt(self, lst, tag):
        idx = max(i for i, t in enumerate(lst) if t == tag)
        return len(lst) - 1 - idx
    def wait_vm(self, tag):
        n = self._cnt(self.vm, tag); assert n <= 63, n
        self.e(f"s_waitcnt vmcnt({n})")
    def wait_lg(self, tag):
        n = self._cnt(self.lg, tag); assert n <= 15, (tag, n)
        self.e(f"s_waitcnt lgkmcnt({n})")
    def text(self): return "\n".join(self.L) + "\n"

SLOT = 36864
NX, NW, NP = 2359296, 5308416, 16*9*16*16*1024
STAMP_OFF = 0x0F000000

def srd(g, d, lo, hi, size):
    g.e(f"s_mov_b32 s{d}, s{lo}")
    g.e(f"s_and_b32 s{d+1}, s{hi}, 0xffff")
    g.e(f"s_mov_b32 s{d+2}, {size}")
    g.e(f"s_mov_b32 s{d+3}, 0x00020000")

def gen_k1(a):
    g = G()
    LA = a.la
    sX, sW, sD, sP = 8, 12, 16, 20
    s_w, s_i, s_j = 34, 35, 36
    sWoff, sHoff, sDA, sDB, sPoff = 37, 38, 39, 40, 41
    sM1, sM2, sM3 = 42, 43, 44
    sSo = 45
    sSt = 46
    sXo = 47
    sT0, sT1, sT2 = 48, 49, 50
    STMP = 52
    vL16 = 0; vW = 1; vH = 5; vD = 9; vA = 13; vAH = 21; vB = 23; vT = 31
    ACC = [32, 96]; HR = 160; TMP = 232
    XA = 0; FR = 144
    name = "standalone__glu_gated_reglu__prompt_kernel"
    g.lab(name)
    g.e("s_cmp_ge_u32 s2, 256")
    g.e("s_cbranch_scc1 K1_END")
    g.e("s_load_dwordx4 s[24:27], s[0:1], 0")
    g.e("s_load_dwordx4 s[28:31], s[0:1], 16")
    g.e("s_load_dwordx2 s[32:33], s[0:1], 48")
    if a.stamps:
        g.e(f"s_memrealtime s[{STMP}:{STMP+1}]")
        g.e(f"s_memtime s[{STMP+2}:{STMP+3}]")
    g.e("v_lshrrev_b32 v1, 6, v0")
    g.e("v_and_b32 v0, 63, v0")
    g.e(f"v_readfirstlane_b32 s{s_w}, v1")
    g.e(f"s_and_b32 s{sT0}, s2, 7")
    g.e(f"s_lshr_b32 s{sT1}, s2, 3")
    g.e(f"s_and_b32 s{s_i}, s{sT0}, 1")
    g.e(f"s_lshl_b32 s{s_i}, s{s_i}, 3")
    g.e(f"s_lshr_b32 s{sT2}, s{sT1}, 2")
    g.e(f"s_add_u32 s{s_i}, s{s_i}, s{sT2}")
    g.e(f"s_lshr_b32 s{s_j}, s{sT0}, 1")
    g.e(f"s_lshl_b32 s{s_j}, s{s_j}, 2")
    g.e(f"s_and_b32 s{sT2}, s{sT1}, 3")
    g.e(f"s_add_u32 s{s_j}, s{s_j}, s{sT2}")
    l3, l7, l4, t0, t1, t2 = TMP, TMP+1, TMP+2, TMP+3, TMP+4, TMP+5
    lane = 0
    g.e(f"v_lshrrev_b32 v{l3}, 3, v{lane}")
    g.e(f"v_and_b32 v{l7}, 7, v{lane}")
    g.e(f"v_lshrrev_b32 v{l4}, 4, v{lane}")
    vXd, vXr = TMP+8, TMP+12
    g.e(f"v_xor_b32 v{t0}, v{l7}, v{l4}")
    g.e(f"v_mul_u32_u24 v{t1}, 1152, v{l3}")
    for mg in range(4):
        g.e(f"v_xor_b32 v{t2}, {4*(mg&1)}, v{t0}")
        g.e(f"v_lshl_add_u32 v{t2}, v{t2}, 4, v{t1}")
        g.e(f"v_add_u32 v{vXd+mg}, {mg*8192}, v{t2}")
    g.e(f"v_and_b32 v{t0}, 1, v{l4}")
    g.e(f"v_lshlrev_b32 v{t0}, 2, v{t0}")
    g.e(f"v_xor_b32 v{t0}, v{t0}, v{l7}")
    g.e(f"v_lshlrev_b32 v{t0}, 4, v{t0}")
    g.e(f"v_mul_u32_u24 v{t1}, 9216, v{l3}")
    g.e(f"v_add_u32 v{t1}, v{t1}, v{t0}")
    for c in range(4):
        g.e(f"v_add_u32 v{vW+c}, {c*(73728-1024)}, v{t1}")
    g.e(f"v_mul_u32_u24 v{t1}, 1152, v{l3}")
    g.e(f"v_add_u32 v{t1}, v{t1}, v{t0}")
    for c in range(4):
        g.e(f"v_add_u32 v{vD+c}, {c*8192}, v{t1}")
    g.e(f"v_lshrrev_b32 v{t0}, 2, v{lane}")
    g.e(f"v_mul_u32_u24 v{t1}, 9216, v{t0}")
    g.e(f"v_and_b32 v{t0}, 3, v{lane}")
    g.e(f"v_lshl_add_u32 v{t1}, v{t0}, 4, v{t1}")
    for c in range(4):
        g.e(f"v_add_u32 v{vH+c}, {c*(16*9216-1024)}, v{t1}")
    i2, i3b, c8, fs32, hh = TMP+16, TMP+17, TMP+18, TMP+19, TMP+20
    g.e(f"v_bfe_u32 v{i2}, v{lane}, 2, 2")
    g.e(f"v_bfe_u32 v{i3b}, v{lane}, 3, 1")
    g.e(f"v_and_b32 v{c8}, 3, v{lane}")
    g.e(f"v_lshlrev_b32 v{c8}, 3, v{c8}")
    g.e(f"v_bfe_u32 v{fs32}, v{lane}, 4, 1")
    g.e(f"v_lshlrev_b32 v{fs32}, 5, v{fs32}")
    g.e(f"v_lshrrev_b32 v{hh}, 5, v{lane}")
    g.e(f"v_add_u32 v{c8}, v{c8}, v{fs32}")
    g.e(f"v_lshl_add_u32 v{t0}, v{hh}, 3, v{i2}")
    g.e(f"v_lshl_add_u32 v{t1}, v{t0}, 7, v{c8}")
    g.e(f"v_lshl_add_u32 v{t1}, v{i3b}, 6, v{t1}")
    g.e(f"v_xor_b32 v{t2}, 64, v{t1}")
    for sl in range(4):
        g.e(f"v_add_u32 v{vA+2*sl}, {sl*SLOT}, v{t1}")
        g.e(f"v_add_u32 v{vA+2*sl+1}, {sl*SLOT}, v{t2}")
    g.e(f"v_lshl_add_u32 v{t1}, v{t0}, 6, v{c8}")
    g.e(f"v_add_u32 v{vAH}, {0*SLOT}, v{t1}")
    g.e(f"v_add_u32 v{vAH+1}, {1*SLOT}, v{t1}")
    g.e(f"v_lshl_add_u32 v{t0}, v{hh}, 2, v{i2}")
    g.e(f"v_lshl_add_u32 v{t1}, v{t0}, 7, v{c8}")
    g.e(f"v_lshl_add_u32 v{t1}, v{i3b}, 6, v{t1}")
    g.e(f"v_xor_b32 v{t2}, 64, v{t1}")
    for sl in range(4):
        g.e(f"v_add_u32 v{vB+2*sl}, {sl*SLOT}, v{t1}")
        g.e(f"v_add_u32 v{vB+2*sl+1}, {sl*SLOT}, v{t2}")
    g.e(f"v_and_b32 v{t0}, 31, v{lane}")
    g.e(f"v_bfe_u32 v{t1}, v{lane}, 1, 3")
    g.e(f"v_lshlrev_b32 v{t0}, 7, v{t0}")
    g.e(f"s_mul_i32 s{sT0}, s{s_w}, {SLOT}")
    g.e(f"v_add_u32 v{t0}, s{sT0}, v{t0}")
    for tt in range(4):
        g.e(f"v_add_u32 v{t2}, {2*tt}, v{hh}")
        g.e(f"v_xor_b32 v{t2}, v{t2}, v{t1}")
        g.e(f"v_lshl_add_u32 v{vXr+tt}, v{t2}, 4, v{t0}")
    g.e(f"v_lshlrev_b32 v{vL16}, 4, v{lane}")
    g.e(f"s_mul_i32 s{sM1}, s{s_w}, 9216")
    g.e(f"s_lshl_b32 s{sM2}, s{s_w}, 13")
    g.e(f"s_lshl_b32 s{sM3}, s{s_w}, 10")
    g.e(f"s_add_u32 s{sM3}, s{sM3}, 32768")
    g.e(f"s_and_b32 s{sT0}, s{s_j}, 1")
    g.e(f"s_mul_i32 s{sT1}, s{s_j}, 288")
    g.e(f"s_lshl_b32 s{sT2}, s{sT0}, 5")
    g.e(f"s_add_u32 s{sDA}, s{sT1}, s{sT2}")
    g.e(f"s_xor_b32 s{sT2}, s{sT0}, 1")
    g.e(f"s_lshl_b32 s{sT2}, s{sT2}, 8")
    g.e(f"s_add_u32 s{sDB}, s{sT1}, s{sT2}")
    g.e(f"s_and_b32 s{sT0}, s{s_w}, 1")
    g.e(f"s_mul_i32 s{sT1}, s{sT0}, {72*9216}")
    g.e(f"s_lshl_b32 s{sT2}, s{sDA}, 1")
    g.e(f"s_add_u32 s{sWoff}, s{sT1}, s{sT2}")
    g.e(f"s_mul_i32 s{sT1}, s{sT0}, {144*9216}")
    g.e(f"s_lshl_b32 s{sT2}, s{sDB}, 1")
    g.e(f"s_add_u32 s{sHoff}, s{sT1}, s{sT2}")
    g.e(f"s_lshl_b32 s{sT0}, s{s_w}, 6")
    g.e(f"s_add_u32 s{sDA}, s{sDA}, s{sT0}")
    g.e(f"s_mul_i32 s{sDA}, s{sDA}, 1152")
    g.e(f"s_lshl_b32 s{sT0}, s{s_w}, 3")
    g.e(f"s_add_u32 s{sDB}, s{sDB}, s{sT0}")
    g.e(f"s_mul_i32 s{sDB}, s{sDB}, 1152")
    g.e(f"s_mul_i32 s{sT0}, s{s_i}, 144")
    g.e(f"s_lshl_b32 s{sT1}, s{s_w}, 1")
    g.e(f"s_add_u32 s{sT0}, s{sT0}, s{sT1}")
    g.e(f"s_lshl_b32 s{sT0}, s{sT0}, 4")
    g.e(f"s_add_u32 s{sT0}, s{sT0}, s{s_j}")
    g.e(f"s_lshl_b32 s{sPoff}, s{sT0}, 10")
    g.e(f"s_lshl_b32 s{sT0}, s{s_i}, 7")
    g.e(f"s_lshl_b32 s{sT1}, s{s_w}, 5")
    g.e(f"s_add_u32 s{sT0}, s{sT0}, s{sT1}")
    g.e(f"s_mul_i32 s{sXo}, s{sT0}, 1152")
    g.e("s_waitcnt lgkmcnt(0)")
    srd(g, sX, 24, 25, NX)
    g.e(f"s_cmp_lt_u32 s{s_w}, 2")
    g.e(f"s_cselect_b32 s{sT0}, s26, s28")
    g.e(f"s_cselect_b32 s{sT1}, s27, s29")
    srd(g, sW, sT0, sT1, NW)
    srd(g, sD, 30, 31, NW)
    srd(g, sP, 32, 33, NP)
    g.e(f"s_mul_i32 s{sT2}, s{s_w}, {SLOT}")
    for L in range(9):
        g.e(f"s_add_u32 m0, s{sT2}, {L*4096}")
        g.e(f"s_add_u32 s{sSo}, s{sXo}, {L*128}")
        for mg in range(4):
            g.vmem(f"buffer_load_dwordx4 v{vXd+mg}, s[{sX}:{sX+3}], s{sSo} offen offset:{mg*1024} lds", ("x", L))
    for t in range(36):
        if t % 4 == 0: g.wait_vm(("x", t//4))
        g.lds(f"ds_read_b128 a[{XA+4*t}:{XA+4*t+3}], v{vXr+(t&3)} offset:{(t>>2)*4096}", ("x", t))
        if t % 12 == 11: g.e("s_waitcnt lgkmcnt(0)")
    g.e("s_waitcnt lgkmcnt(0)")
    g.e("s_barrier")
    if a.stamps: g.e(f"s_memtime s[{STMP+6}:{STMP+7}]")

    NS = 27
    def dma_groups(s):
        slot = s % 4
        out = []
        if s < 16:
            u, ks = s >> 2, s & 3
            for gi in range(3):
                pre = [f"s_add_u32 m0, s{sM1}, {slot*SLOT + gi*4096}",
                       f"s_add_u32 s{sSo}, s{sWoff}, {ks*144*9216 + gi*4*73728 + u*128}"]
                d = [f"buffer_load_dwordx4 v{vW+c}, s[{sW}:{sW+3}], s{sSo} offen offset:{c*1024} lds" for c in range(4 if gi < 2 else 1)]
                out.append((pre, d))
        elif s < 18:
            hs = s - 16
            for gi in range(3):
                pre = [f"s_add_u32 m0, s{sM1}, {slot*SLOT + gi*4096}",
                       f"s_add_u32 s{sSo}, s{sHoff}, {hs*288*9216 + gi*4*16*9216}"]
                d = [f"buffer_load_dwordx4 v{vH+c}, s[{sW}:{sW+3}], s{sSo} offen offset:{c*1024} lds" for c in range(4 if gi < 2 else 1)]
                out.append((pre, d))
        else:
            cl = s - 18
            for gi in range(2):
                pre = [f"s_add_u32 m0, s{sM2}, {slot*SLOT + gi*4096}",
                       f"s_add_u32 s{sSo}, s{sDA}, {cl*128 + gi*4*8*1152}"]
                d = [f"buffer_load_dwordx4 v{vD+c}, s[{sD}:{sD+3}], s{sSo} offen offset:{c*1024} lds" for c in range(4)]
                out.append((pre, d))
            pre = [f"s_add_u32 m0, s{sM3}, {slot*SLOT}", f"s_add_u32 s{sSo}, s{sDB}, {cl*128}"]
            out.append((pre, [f"buffer_load_dwordx4 v{vD}, s[{sD}:{sD+3}], s{sSo} offen lds"]))
        return out
    def dma_items(s):
        items = []
        for pre, d in dma_groups(s):
            for n, ins in enumerate(d):
                it = []
                if n == 0: it += [("s", p) for p in pre]
                it.append(("dma", ins))
                items.append(it)
        return items
    mf = []
    for s in range(NS):
        slot = s % 4
        if s < 16:
            u, ks = s >> 2, s & 3
            for kt in range(9):
                t = 9*ks + kt
                for mt in range(2):
                    for ft in range(2):
                        acc = ACC[u & 1] + (mt*2+ft)*16
                        im = mt*18432 + kt*2048
                        mf.append((s, acc, vA+2*slot+ft, im, im+512, f"a[{XA+4*t}:{XA+4*t+3}]", t == 0))
        elif s < 18:
            hs = s - 16
            for kt in range(18):
                t = 18*hs + kt
                for mt in range(2):
                    acc = ACC[0] + mt*32
                    im = mt*18432 + kt*1024
                    mf.append((s, acc, vAH+hs, im, im+256, f"a[{XA+4*t}:{XA+4*t+3}]", t == 0))
        else:
            cl = s - 18
            for k in range(18):
                for dt in range(2):
                    acc = ACC[(cl+1) & 1] + dt*16
                    im = k*2048
                    mf.append((s, acc, vB+2*slot+dt, im, im+1024, f"v[{HR+4*k}:{HR+4*k+3}]", k == 0))
    NM = len(mf); assert NM == 27*36
    fill = {}
    def add(gap, fn):
        fill.setdefault(gap, []).append(fn)
    def epi1(u, tiles, start):
        ins = []
        for (gacc, uacc, kap) in tiles:
            for tt in range(2):
                for n in range(4):
                    r = 8*tt + 2*n
                    ins.append(f"v_max_f32 v{gacc+r}, 0, v{gacc+r}")
                    ins.append(f"v_max_f32 v{gacc+r+1}, 0, v{gacc+r+1}")
                    ins.append(f"v_mul_f32 v{gacc+r}, v{gacc+r}, v{uacc+r}")
                    ins.append(f"v_mul_f32 v{gacc+r+1}, v{gacc+r+1}, v{uacc+r+1}")
                    ins.append(f"v_cvt_pk_bf16_f32 v{HR+4*(kap+tt)+n}, v{gacc+r}, v{gacc+r+1}")
        per = a.vpg
        for n, x in enumerate(ins):
            add(start + n//per, (lambda x=x: g.e(x)))
        return start + (len(ins)-1)//per
    for u in range(4):
        base = ACC[u & 1]
        last = epi1(u, [(base, base+32, 4*u), (base+16, base+48, 4*u+2)], 36*4*(u+1) + 5)
    last = epi1(4, [(ACC[0], ACC[0]+32, 16)], 36*18 + 5)
    assert last < 36*18 + 32 - 2, last
    def epi2(cl, start):
        base = ACC[(cl+1) & 1]
        items = []
        for dt in range(2):
            for hf in range(2):
                st = TMP + 4*(dt*2+hf)
                for n in range(4):
                    r = dt*16 + hf*8 + 2*n
                    items.append(("v", f"v_cvt_pk_bf16_f32 v{st+n}, v{base+r}, v{base+r+1}"))
                items.append(("s", f"s_add_u32 s{sSt}, s{sPoff}, {cl*262144 + (dt*8+hf)*16384}"))
                items.append(("st", f"buffer_store_dwordx4 v[{st}:{st+3}], v{vL16}, s[{sP}:{sP+3}], s{sSt} offen {a.stflag}".rstrip()))
        per = 2
        for n, (k, x) in enumerate(items):
            if k == "st": add(start + n//per, (lambda x=x: g.vmem(x, "st")))
            else: add(start + n//per, (lambda x=x: g.e(x)))
    for cl in range(9):
        epi2(cl, 36*(18+cl+1) + 5)
    def place_dma(s, g0):
        items = dma_items(s)
        for n, it in enumerate(items):
            def fn(it=it, s=s):
                for k, x in it:
                    if k == "dma":
                        if not a.nodma: g.vmem(x, ("W", s))
                    else: g.e(x)
            add(g0 + 1 + n*a.dstep, fn)
    for s in range(2):
        for it in dma_items(s):
            for k, x in it:
                if k == "dma": g.vmem(x, ("W", s))
                else: g.e(x)
    for s in range(0, NS-2):
        place_dma(s+2, 36*s - LA)
    def reads(n):
        s, acc, bv, i0, i1, B, first = mf[n]
        fr = FR + 4*(n % 8)
        if a.noread and n >= 8: return
        g.lds(f"ds_read_b64_tr_b16 a[{fr}:{fr+1}], v{bv} offset:{i0}", ("A", n))
        g.lds(f"ds_read_b64_tr_b16 a[{fr+2}:{fr+3}], v{bv} offset:{i1}", ("A", n))
    maxgap = max(fill.keys())
    for n in range(-LA, max(NM, maxgap+1)):
        if (n + LA) % 36 == 0 and n + LA < NM:
            s = (n + LA)//36
            if a.nodma and s >= 2: pass
            else: g.wait_vm(("W", s))
            g.e("s_barrier")
            if a.stamps and s in (1, 16, 18, 26):
                k = {1: 8, 16: 10, 18: 12, 26: 14}[s]
                g.e(f"s_memtime s[{STMP+k}:{STMP+k+1}]")
        for fn in fill.get(n, []): fn()
        if n + LA < NM: reads(n + LA)
        if 0 <= n < NM:
            s, acc, bv, i0, i1, B, first = mf[n]
            if not (a.noread and n >= 8): g.wait_lg(("A", n))
            fr = FR + 4*(n % 8)
            C = "0" if first else f"v[{acc}:{acc+15}]"
            g.e(f"v_mfma_f32_32x32x16_bf16 v[{acc}:{acc+15}], a[{fr}:{fr+3}], {B}, {C}")
        elif n >= NM:
            g.e("s_nop 3")
    if a.stamps:
        g.e("s_waitcnt vmcnt(0)")
        g.e(f"s_memrealtime s[{STMP+16}:{STMP+17}]")
        g.e(f"s_memtime s[{STMP+4}:{STMP+5}]")
        g.e("s_waitcnt lgkmcnt(0)")
        g.e(f"s_cmp_lg_u32 s{s_w}, 0")
        g.e("s_cbranch_scc1 K1_END")
        g.e(f"s_add_u32 s24, s32, {STAMP_OFF}")
        g.e("s_addc_u32 s25, s33, 0")
        g.e(f"s_lshl_b32 s26, s2, 7")
        g.e("s_add_u32 s24, s24, s26")
        g.e("s_addc_u32 s25, s25, 0")
        order = [STMP, STMP+16, STMP+2, STMP+4, STMP+6, STMP+8, STMP+10, STMP+12, STMP+14]
        g.e("v_mov_b32 v1, 0")
        for n, r in enumerate(order):
            g.e(f"v_mov_b32 v2, s{r}")
            g.e(f"v_mov_b32 v3, s{r+1}")
            g.e(f"global_store_dwordx2 v1, v[2:3], s[24:25] offset:{n*8}")
            g.e("s_nop 1")
        g.e("v_mov_b32 v2, 0"); g.e("v_mov_b32 v3, 0")
        for n in range(len(order), 16):
            g.e(f"global_store_dwordx2 v1, v[2:3], s[24:25] offset:{n*8}")
    g.lab("K1_END")
    g.e("s_endpgm")
    return g.text()

def gen_k2(a):
    g = G()
    g.lab("reduce_kernel")
    g.e("s_cmp_ge_u32 s2, 576")
    g.e("s_cbranch_scc1 K2_END")
    g.e("s_load_dwordx2 s[24:25], s[0:1], 32")
    g.e("s_load_dwordx2 s[26:27], s[0:1], 48")
    g.e("v_lshrrev_b32 v1, 6, v0")
    g.e("v_and_b32 v0, 63, v0")
    g.e("v_readfirstlane_b32 s4, v1")
    g.e("s_lshl_b32 s5, s2, 2")
    g.e("s_add_u32 s5, s5, s4")
    g.e("s_and_b32 s6, s5, 15")
    g.e("s_lshr_b32 s7, s5, 4")
    g.e("s_mul_i32 s16, s7, 7282")
    g.e("s_lshr_b32 s16, s16, 16")
    g.e("s_mul_i32 s17, s16, 9")
    g.e("s_sub_u32 s17, s7, s17")
    g.e("s_lshl_b32 s18, s5, 14")
    g.e("v_lshlrev_b32 v2, 4, v0")
    g.e("s_waitcnt lgkmcnt(0)")
    srd(g, 8, 26, 27, NP)
    srd(g, 12, 24, 25, NX)
    for j in range(16):
        if j % 4 == 0: g.e(f"s_add_u32 s19, s18, {j*1024}")
        g.vmem(f"buffer_load_dwordx4 v[{16+4*j}:{19+4*j}], v2, s[8:11], s19 offen offset:{(j%4)*1024}", j)
    g.e("s_lshr_b32 s20, s6, 1"); g.e("s_and_b32 s20, s20, 3")
    g.e("s_lshl_b32 s20, s20, 5")
    g.e("s_lshl_b32 s21, s16, 7")
    g.e("s_add_u32 s20, s20, s21")
    g.e("s_mul_i32 s20, s20, 1152")
    g.e("s_lshl_b32 s21, s17, 7")
    g.e("s_add_u32 s20, s20, s21")
    g.e("s_lshr_b32 s21, s6, 3"); g.e("s_lshl_b32 s21, s21, 6")
    g.e("s_add_u32 s20, s20, s21")
    g.e("s_and_b32 s21, s6, 1"); g.e("s_lshl_b32 s21, s21, 5")
    g.e("s_add_u32 s20, s20, s21")
    g.e("v_and_b32 v3, 31, v0")
    g.e("v_mul_u32_u24 v3, 1152, v3")
    g.e("v_lshrrev_b32 v4, 5, v0")
    g.e("v_lshl_add_u32 v3, v4, 4, v3")
    for j in range(16):
        g.wait_vm(j)
        for n in range(4):
            r = 16+4*j+n
            if j == 0:
                g.e(f"v_lshlrev_b32 v{4+2*n}, 16, v{r}")
                g.e(f"v_and_b32 v{5+2*n}, 0xffff0000, v{r}")
            else:
                g.e(f"v_lshlrev_b32 v12, 16, v{r}")
                g.e(f"v_and_b32 v13, 0xffff0000, v{r}")
                g.e(f"v_add_f32 v{4+2*n}, v{4+2*n}, v12")
                g.e(f"v_add_f32 v{5+2*n}, v{5+2*n}, v13")
    for n in range(4):
        g.e(f"v_cvt_pk_bf16_f32 v{16+n}, v{4+2*n}, v{5+2*n}")
    g.e("s_nop 1")
    g.e("v_permlane32_swap_b32 v16, v18")
    g.e("v_permlane32_swap_b32 v17, v19")
    g.e("buffer_store_dwordx4 v[16:19], v3, s[12:15], s20 offen")
    g.lab("K2_END")
    g.e("s_endpgm")
    return g.text()

HDR = """; GLU (ReGLU) fused kernel
; @launch kernel=standalone__glu_gated_reglu__prompt_kernel grid=(256,1,1) block=(256,1,1) lds=163840
; @launch kernel=reduce_kernel grid=(576,1,1) block=(256,1,1) lds=0
.amdgcn_target "amdgcn-amd-amdhsa--gfx950"
.text
"""
def kd(name, vg, acc, sg):
    return f""".p2align 6
.amdhsa_kernel {name}
  .amdhsa_next_free_vgpr {vg}
  .amdhsa_next_free_sgpr {sg}
  .amdhsa_accum_offset {acc}
  .amdhsa_group_segment_fixed_size 0
  .amdhsa_kernarg_size 56
  .amdhsa_user_sgpr_count 2
  .amdhsa_user_sgpr_kernarg_segment_ptr 1
  .amdhsa_system_sgpr_workgroup_id_x 1
.end_amdhsa_kernel
"""
def main():
    p = argparse.ArgumentParser()
    p.add_argument("-o", default="standalone__glu_gated_reglu__prompt.s")
    p.add_argument("--la", type=int, default=6)
    p.add_argument("--vpg", type=int, default=2)
    p.add_argument("--dstep", type=int, default=3)
    p.add_argument("--stamps", type=int, default=0)
    p.add_argument("--nodma", type=int, default=0)
    p.add_argument("--noread", type=int, default=0)
    p.add_argument("--stflag", default="")
    a = p.parse_args()
    out = HDR
    for nm, body in (("standalone__glu_gated_reglu__prompt_kernel", gen_k1(a)), ("reduce_kernel", gen_k2(a))):
        out += f".globl {nm}\n.p2align 8\n.type {nm},@function\n" + body
    out += '.section .rodata,"a"\n'
    out += kd("standalone__glu_gated_reglu__prompt_kernel", 512, 256, 80)
    out += kd("reduce_kernel", 80, 80, 32)
    open(a.o, "w").write(out)
main()
```

```python
import sys, argparse

class G:
    def __init__(self):
        self.L = []; self.vm = []; self.lg = []; self.vdone = -1; self.ldone = -1
    def e(self, s): self.L.append("    " + s)
    def lab(self, s): self.L.append(s + ":")
    def c(self, s): self.L.append("    ; " + s)
    def vmem(self, s, tag, only0=False): self.e(s); self.vm.append((tag, only0))
    def lds(self, s, tag): self.e(s); self.lg.append(tag)
    def vlast(self, tag):
        for i in range(len(self.vm)-1, -1, -1):
            if self.vm[i][0] == tag: return i
        raise KeyError(tag)
    def has(self, tag): return any(t == tag for t, _ in self.vm)
    def vm_done(self, tag): return self.vlast(tag) <= self.vdone
    def wait_vm(self, *tags):
        idx = max(self.vlast(t) for t in tags)
        if idx <= self.vdone: return
        n = sum(1 for t, o in self.vm[idx+1:] if not o); assert n <= 63, n
        self.e(f"s_waitcnt vmcnt({n})"); self.vdone = idx
    def wait_vm0(self, tag):
        idx = self.vlast(tag)
        if idx <= self.vdone: return
        n = len(self.vm) - 1 - idx
        self.e(f"s_waitcnt vmcnt({min(n,63)})")
    def wait_vm_all(self):
        self.e("s_waitcnt vmcnt(0)"); self.vdone = len(self.vm) - 1
    def wait_lg(self, tag):
        idx = None
        for i in range(len(self.lg)-1, -1, -1):
            if self.lg[i] == tag: idx = i; break
        assert idx is not None, tag
        if idx <= self.ldone: return
        n = len(self.lg) - 1 - idx; assert n <= 15, (tag, n)
        self.e(f"s_waitcnt lgkmcnt({n})"); self.ldone = idx
    def wait_lg_all(self):
        self.e("s_waitcnt lgkmcnt(0)"); self.ldone = len(self.lg) - 1
    def text(self): return "\n".join(self.L) + "\n"

SLOT = 36864
XR0, XRW = 110592, 13312
NX, NW = 2359296, 5308416
H_OFF = 0
H_SZ = 16*16*4*18432
PA_OFF = H_SZ
PA_SZ = 16*4*2*16*4*1024
P8_OFF = PA_OFF + PA_SZ
P8_SZ = 16*16*16*1024
FH_OFF = P8_OFF + P8_SZ
FP_OFF = FH_OFF + 64*128
WS_USED = FP_OFF + 64*128
STAMP_OFF = 0x0F000000
KNAME = "standalone__glu_gated_reglu__prompt_kernel"
def slot_of(s): return s if s < 3 else (s + 1) % 4

def srd(lo, hi, d, size):
    return [f"s_mov_b32 s{d}, s{lo}", f"s_and_b32 s{d+1}, s{hi}, 0xffff", f"s_mov_b32 s{d+2}, {size}", f"s_mov_b32 s{d+3}, 0x00020000"]

def gen(a):
    g = G()
    LA = a.la
    sX, sW, sD, sP, sO, sG = 8, 12, 16, 20, 24, 28
    KA = 88
    n = [32]
    def S(cnt=1, al=1):
        while n[0] % al: n[0] += 1
        r = n[0]; n[0] += cnt; return r
    s_w, s_i, s_j, s_q, s_r = S(), S(), S(), S(), S()
    sWoff, sHoff, sM1, sMW = S(), S(), S(), S()
    sRA, sRB = S(4), S(4)
    sRA8, sRB8 = S(), S()
    sHL = S(4); sHS = sHL
    sPA, sP8, sRAl, sR8l = S(), S(), S(), S()
    sOA, sO8 = S(), S()
    sSo, sSt, sSl, sXo, sXM = S(), S(), S(), S(), S()
    sT0, sT1, sT2, sT3 = S(), S(), S(), S()
    sSpin = S()
    sTok, sFH, sFHi, sFP, sFHw, sFPw, sTl = S(), S(), S(), S(), S(), S(), S()
    sPfA, sPfB, sPfD = S(), S(), S()
    sCm = S(2, 2)
    sWS = S(2, 2)
    assert n[0] <= 88, n[0]
    vL16 = 0; vW = 1; vH = 5; vD = 9; vP9 = 10; vO = 11; vO8 = 12; vA = 13; vAH = 21; vB = 23; vR8 = 31
    ACC = [32, 96]; HR = 160; TMP = 232; POLL = TMP + 16; vDum = TMP + 21; vFl = TMP + 22; vP9d = TMP + 23
    accof = {"8": (48, 80), "A": (96, 112), "B": (128, 144)}
    XA = 0; FR = 144
    vXd, vXr = HR, HR + 4
    l3, l7, l4, t0, t1, t2, i2, i3b, c8, fs32, hh, lane = [HR + 8 + k for k in range(12)]
    vPx = HR + 20
    stamp_regs = [(90, 91), (92, 93), (94, 95), (96, 97), (98, 99), (100, 101), (88, 89)]
    stamp_used = []
    def stamp(name):
        if not a.stamps: return
        k = len(stamp_used)
        if k >= len(stamp_regs): return
        r = stamp_regs[k][0]; stamp_used.append(name)
        g.e(f"s_memtime s[{r}:{r+1}]")

    g.lab(KNAME)
    g.e("s_cmp_ge_u32 s2, 256")
    g.e("s_cbranch_scc1 K1_END")
    g.e(f"s_load_dwordx4 s[{KA}:{KA+3}], s[0:1], 0")
    g.e(f"s_load_dwordx4 s[{KA+4}:{KA+7}], s[0:1], 16")
    g.e(f"s_load_dwordx4 s[{KA+8}:{KA+11}], s[0:1], 32")
    g.e(f"s_load_dwordx2 s[{KA+12}:{KA+13}], s[0:1], 48")
    g.e(f"s_memrealtime s[4:5]")
    if a.stamps: g.e(f"s_memtime s[6:7]")
    g.e("v_lshrrev_b32 v1, 6, v0")
    g.e(f"v_and_b32 v{lane}, 63, v0")
    g.e(f"v_readfirstlane_b32 s{s_w}, v1")
    g.e(f"s_and_b32 s{sT0}, s2, 7")
    g.e(f"s_lshr_b32 s{sT1}, s2, 3")
    g.e(f"s_and_b32 s{s_i}, s{sT0}, 1")
    g.e(f"s_lshl_b32 s{s_i}, s{s_i}, 3")
    g.e(f"s_lshr_b32 s{sT2}, s{sT1}, 2")
    g.e(f"s_add_u32 s{s_i}, s{s_i}, s{sT2}")
    g.e(f"s_lshr_b32 s{s_q}, s{sT0}, 1")
    g.e(f"s_and_b32 s{s_r}, s{sT1}, 3")
    g.e(f"s_lshl_b32 s{s_j}, s{s_q}, 2")
    g.e(f"s_add_u32 s{s_j}, s{s_j}, s{s_r}")
    g.e(f"v_lshrrev_b32 v{l3}, 3, v{lane}")
    g.e(f"v_and_b32 v{l7}, 7, v{lane}")
    g.e(f"v_lshrrev_b32 v{l4}, 4, v{lane}")
    g.e(f"v_xor_b32 v{t0}, v{l7}, v{l4}")
    g.e(f"v_mul_u32_u24 v{t1}, 1152, v{l3}")
    for mg in range(4):
        g.e(f"v_xor_b32 v{t2}, {4*(mg&1)}, v{t0}")
        g.e(f"v_lshl_add_u32 v{t2}, v{t2}, 4, v{t1}")
        g.e(f"v_add_u32 v{vXd+mg}, {mg*8192}, v{t2}")
    g.e(f"s_lshl_b32 s{sT0}, s{s_i}, 7")
    g.e(f"s_lshl_b32 s{sT1}, s{s_w}, 5")
    g.e(f"s_add_u32 s{sT0}, s{sT0}, s{sT1}")
    g.e(f"s_mul_i32 s{sXo}, s{sT0}, 1152")
    g.e(f"s_mul_i32 s{sXM}, s{s_w}, {XRW}")
    g.e(f"s_add_u32 s{sXM}, s{sXM}, {XR0}")
    def rows(jreg, dA, dB):
        return [f"s_and_b32 s{sT0}, s{jreg}, 1", f"s_mul_i32 s{sT1}, s{jreg}, 288", f"s_lshl_b32 s{sT2}, s{sT0}, 5",
                f"s_add_u32 s{dA}, s{sT1}, s{sT2}", f"s_xor_b32 s{sT2}, s{sT0}, 1", f"s_lshl_b32 s{sT2}, s{sT2}, 8",
                f"s_add_u32 s{dB}, s{sT1}, s{sT2}"]
    for x in rows(s_j, sRA8, sRB8): g.e(x)
    g.e(f"v_and_b32 v{t0}, 1, v{l4}")
    g.e(f"v_lshlrev_b32 v{t0}, 2, v{t0}")
    g.e(f"v_xor_b32 v{t0}, v{t0}, v{l7}")
    g.e(f"v_lshlrev_b32 v{t0}, 4, v{t0}")
    g.e(f"v_mul_u32_u24 v{t1}, 9216, v{l3}")
    g.e(f"v_add_u32 v{t1}, v{t1}, v{t0}")
    for c in range(4): g.e(f"v_add_u32 v{vW+c}, {c*(73728-1024)}, v{t1}")
    g.e(f"v_mul_u32_u24 v{t1}, 1152, v{l3}")
    g.e(f"v_add_u32 v{vD}, v{t1}, v{t0}")
    g.e(f"s_mul_i32 s{sM1}, s{s_w}, 9216")
    g.e(f"s_and_b32 s{sT0}, s{s_w}, 1")
    g.e(f"s_mul_i32 s{sT1}, s{sT0}, {72*9216}")
    g.e(f"s_lshl_b32 s{sPfA}, s{sRA8}, 1")
    g.e(f"s_add_u32 s{sWoff}, s{sT1}, s{sPfA}")
    g.e(f"s_and_b32 s{sT0}, s{s_i}, 7")
    g.e(f"s_mul_i32 s{sT1}, s{sT0}, 18")
    g.e(f"s_and_b32 s{sT2}, s{s_w}, 1")
    g.e(f"s_mul_i32 s{sT2}, s{sT2}, 9")
    g.e(f"s_add_u32 s{sT1}, s{sT1}, s{sT2}")
    g.e(f"v_min_u32 v{vP9d}, 8, v{lane}")
    g.e(f"v_add_u32 v{vP9}, s{sT1}, v{vP9d}")
    g.e(f"v_mul_u32_u24 v{vP9}, 9216, v{vP9}")
    g.e(f"v_lshlrev_b32 v{vP9d}, 7, v{vP9d}")
    g.e(f"s_lshl_b32 s{sPfB}, s{sRB8}, 1")
    g.e(f"s_and_b32 s{sT3}, s{s_w}, 1")
    g.e(f"s_mul_i32 s{sT1}, s{sT3}, {144*9216}")
    g.e(f"s_add_u32 s{sHoff}, s{sT1}, s{sPfB}")
    g.e(f"s_and_b32 s{sPfB}, s{sPfB}, 0xffffff80")
    g.e(f"s_lshl_b32 s{sT0}, s{sT0}, 2")
    g.e(f"s_add_u32 s{sT0}, s{sT0}, s{s_r}")
    g.e(f"s_lshl_b32 s{sT0}, s{sT0}, 2")
    g.e(f"s_add_u32 s{sT0}, s{sT0}, s{s_w}")
    g.e(f"s_mul_i32 s{sT0}, s{sT0}, {81*128}")
    g.e(f"s_mul_i32 s{sT1}, s{s_q}, {1152*1152}")
    g.e(f"s_add_u32 s{sPfD}, s{sT0}, s{sT1}")
    g.e(f"s_lshl_b32 s{sT0}, s{s_i}, 7")
    g.e(f"s_lshl_b32 s{sT1}, s{s_r}, 5")
    g.e(f"s_add_u32 s{sT0}, s{sT0}, s{sT1}")
    g.e(f"s_lshl_b32 s{sT1}, s{s_w}, 3")
    g.e(f"s_add_u32 s{sT0}, s{sT0}, s{sT1}")
    g.e(f"v_add_u32 v{vPx}, s{sT0}, v{l3}")
    g.e(f"v_mul_u32_u24 v{vPx}, 1152, v{vPx}")
    g.e(f"v_and_b32 v{t2}, 3, v{lane}")
    g.e(f"v_lshl_add_u32 v{vPx}, v{t2}, 7, v{vPx}")
    g.e("s_waitcnt lgkmcnt(0)")
    if a.prostamp: g.e("s_memtime s[0:1]")
    for x in srd(KA, KA+1, sX, NX): g.e(x)
    g.e(f"s_cmp_lt_u32 s{s_w}, 2")
    g.e(f"s_cselect_b32 s{sT0}, s{KA+2}, s{KA+4}")
    g.e(f"s_cselect_b32 s{sT1}, s{KA+3}, s{KA+5}")
    for x in srd(sT0, sT1, sW, NW): g.e(x)

    setup = []
    A_ = setup.append
    for x in srd(KA+6, KA+7, sD, NW) + srd(KA+12, KA+13, sP, WS_USED) + srd(KA+8, KA+9, sO, NX) + srd(KA+10, KA+11, sG, 256): A_(x)
    if a.stamps or a.dbgtime:
        A_(f"s_mov_b32 s{sWS}, s{KA+12}"); A_(f"s_mov_b32 s{sWS+1}, s{KA+13}")
    A_(f"v_lshrrev_b32 v{hh}, 5, v{lane}")
    A_(f"v_and_b32 v{t0}, 31, v{lane}")
    A_(f"v_mul_u32_u24 v{vO}, 1152, v{t0}")
    A_(f"v_lshl_add_u32 v{vO}, v{hh}, 4, v{vO}")
    A_(f"v_bfe_u32 v{t1}, v{lane}, 1, 3")
    A_(f"v_lshlrev_b32 v{t0}, 7, v{t0}")
    A_(f"v_add_u32 v{t0}, s{sXM}, v{t0}")
    for tt in range(4):
        A_(f"v_add_u32 v{t2}, {2*tt}, v{hh}")
        A_(f"v_xor_b32 v{t2}, v{t2}, v{t1}")
        A_(f"v_lshl_add_u32 v{vXr+tt}, v{t2}, 4, v{t0}")
    A_(f"v_bfe_u32 v{i2}, v{lane}, 2, 2")
    A_(f"v_bfe_u32 v{i3b}, v{lane}, 3, 1")
    A_(f"v_and_b32 v{c8}, 3, v{lane}")
    A_(f"v_lshlrev_b32 v{vFl}, 7, v{c8}")
    A_(f"v_lshlrev_b32 v{c8}, 3, v{c8}")
    A_(f"v_bfe_u32 v{fs32}, v{lane}, 4, 1")
    A_(f"v_lshlrev_b32 v{fs32}, 5, v{fs32}")
    A_(f"v_add_u32 v{c8}, v{c8}, v{fs32}")
    A_(f"v_lshl_add_u32 v{t0}, v{hh}, 3, v{i2}")
    A_(f"v_lshl_add_u32 v{t1}, v{t0}, 7, v{c8}")
    A_(f"v_lshl_add_u32 v{t1}, v{i3b}, 6, v{t1}")
    A_(f"v_xor_b32 v{t2}, 64, v{t1}")
    for sl in range(4):
        A_(f"v_add_u32 v{vA+2*sl}, {sl*SLOT}, v{t1}")
        A_(f"v_add_u32 v{vA+2*sl+1}, {sl*SLOT}, v{t2}")
    A_(f"v_lshl_add_u32 v{t1}, v{t0}, 6, v{c8}")
    A_(f"v_add_u32 v{vAH}, {slot_of(16)*SLOT}, v{t1}")
    A_(f"v_add_u32 v{vAH+1}, {slot_of(17)*SLOT}, v{t1}")
    A_(f"v_lshl_add_u32 v{t0}, v{hh}, 2, v{i2}")
    A_(f"v_lshl_add_u32 v{t1}, v{t0}, 7, v{c8}")
    A_(f"v_lshl_add_u32 v{t1}, v{i3b}, 6, v{t1}")
    A_(f"v_xor_b32 v{t2}, 64, v{t1}")
    for sl in range(4):
        A_(f"v_add_u32 v{vB+2*sl}, {sl*SLOT}, v{t1}")
        A_(f"v_add_u32 v{vB+2*sl+1}, {sl*SLOT}, v{t2}")
    n_setup_needed_for_start = len(setup)
    n_setup_pf = len(setup)
    A_(f"v_lshrrev_b32 v{t0}, 2, v{lane}")
    A_(f"v_mul_u32_u24 v{t1}, 9216, v{t0}")
    A_(f"v_and_b32 v{t0}, 3, v{lane}")
    A_(f"v_lshl_add_u32 v{t1}, v{t0}, 4, v{t1}")
    for c in range(4): A_(f"v_add_u32 v{vH+c}, {c*(16*9216-1024)}, v{t1}")
    A_(f"v_and_b32 v{t1}, 15, v{lane}")
    A_(f"v_mul_u32_u24 v{vO8}, 1152, v{t1}")
    A_(f"v_and_b32 v{t2}, 1, v{l4}")
    A_(f"v_lshl_add_u32 v{vO8}, v{t2}, 2, v{vO8}")
    A_(f"v_lshl_add_u32 v{vO8}, v{hh}, 4, v{vO8}")
    A_(f"v_lshlrev_b32 v{vR8}, 10, v{l4}")
    A_(f"v_lshl_add_u32 v{vR8}, v{t1}, 4, v{vR8}")
    A_(f"v_lshlrev_b32 v{vL16}, 4, v{lane}")
    n_setup_valu = len(setup)
    late = []
    B_ = late.append
    B_(f"s_lshl_b32 s{sMW}, s{s_w}, 10")
    for k in range(4):
        B_(f"s_add_u32 s{sT3}, s{s_r}, {k}")
        B_(f"s_and_b32 s{sT3}, s{sT3}, 3")
        B_(f"s_lshl_b32 s{sSt}, s{s_q}, 2")
        B_(f"s_add_u32 s{sT3}, s{sT3}, s{sSt}")
        for x in rows(sT3, sRA+k, sRB+k): B_(x)
        B_(f"s_lshl_b32 s{sT0}, s{s_i}, 4")
        B_(f"s_add_u32 s{sT0}, s{sT0}, s{sT3}")
        B_(f"s_lshl_b32 s{sT0}, s{sT0}, 2")
        B_(f"s_add_u32 s{sT0}, s{sT0}, s{s_w}")
        B_(f"s_mul_i32 s{sHL+k}, s{sT0}, 18432")
    B_(f"s_lshl_b32 s{sT3}, s{s_w}, 3")
    B_(f"s_lshl_b32 s{sSt}, s{s_r}, 8")
    for r_ in [sRA+k for k in range(4)] + [sRB+k for k in range(4)]:
        B_(f"s_add_u32 s{r_}, s{r_}, s{sT3}")
        B_(f"s_mul_i32 s{r_}, s{r_}, 1152")
        B_(f"s_add_u32 s{r_}, s{r_}, s{sSt}")
    for r_ in (sRA8, sRB8):
        B_(f"s_add_u32 s{r_}, s{r_}, s{sT3}")
        B_(f"s_mul_i32 s{r_}, s{r_}, 1152")
    B_(f"s_lshl_b32 s{sT0}, s{s_i}, 2")
    B_(f"s_add_u32 s{sT0}, s{sT0}, s{s_r}")
    B_(f"s_lshl_b32 s{sT3}, s{sT0}, 7")
    B_(f"s_add_u32 s{sFP}, s{sT3}, {FP_OFF}")
    B_(f"s_lshl_b32 s{sT3}, s{s_q}, 2")
    B_(f"s_add_u32 s{sFPw}, s{sFP}, s{sT3}")
    B_(f"s_lshl_b32 s{sT0}, s{sT0}, 5")
    B_(f"s_lshl_b32 s{sT1}, s{s_w}, 1")
    B_(f"s_add_u32 s{sT0}, s{sT0}, s{sT1}")
    B_(f"s_lshl_b32 s{sT2}, s{sT0}, 2")
    B_(f"s_add_u32 s{sT2}, s{sT2}, s{s_q}")
    B_(f"s_lshl_b32 s{sT2}, s{sT2}, 10")
    B_(f"s_add_u32 s{sPA}, s{sT2}, {PA_OFF}")
    B_(f"s_lshr_b32 s{sT1}, s{s_q}, 1")
    B_(f"s_lshl_b32 s{sT1}, s{sT1}, 3")
    B_(f"s_add_u32 s{sT0}, s{sT0}, s{sT1}")
    B_(f"s_and_b32 s{sT1}, s{s_q}, 1")
    B_(f"s_add_u32 s{sT0}, s{sT0}, s{sT1}")
    B_(f"s_lshl_b32 s{sT0}, s{sT0}, 12")
    B_(f"s_add_u32 s{sRAl}, s{sT0}, {PA_OFF}")
    B_(f"s_lshl_b32 s{sT0}, s{s_i}, 4")
    B_(f"s_lshl_b32 s{sT1}, s{s_w}, 1")
    B_(f"s_add_u32 s{sT1}, s{sT0}, s{sT1}")
    B_(f"s_lshl_b32 s{sT1}, s{sT1}, 4")
    B_(f"s_add_u32 s{sT1}, s{sT1}, s{s_j}")
    B_(f"s_lshl_b32 s{sT1}, s{sT1}, 10")
    B_(f"s_add_u32 s{sP8}, s{sT1}, {P8_OFF}")
    B_(f"s_add_u32 s{sT3}, s{sT0}, s{s_j}")
    B_(f"s_lshl_b32 s{sT1}, s{sT3}, 14")
    B_(f"s_lshl_b32 s{sT2}, s{s_w}, 8")
    B_(f"s_add_u32 s{sT1}, s{sT1}, s{sT2}")
    B_(f"s_add_u32 s{sR8l}, s{sT1}, {P8_OFF}")
    B_(f"s_lshl_b32 s{sT1}, s{s_i}, 9")
    B_(f"s_add_u32 s{sFHi}, s{sT1}, {FH_OFF}")
    B_(f"s_lshl_b32 s{sT1}, s{s_q}, 7")
    B_(f"s_add_u32 s{sFH}, s{sFHi}, s{sT1}")
    B_(f"s_lshl_b32 s{sT1}, s{s_r}, 2")
    B_(f"s_add_u32 s{sFHw}, s{sFH}, s{sT1}")
    B_(f"s_lshl_b32 s{sT1}, s{s_r}, 8")
    B_(f"s_add_u32 s{sOA}, s{sXo}, s{sT1}")
    B_(f"s_lshl_b32 s{sT1}, s{s_q}, 5")
    B_(f"s_add_u32 s{sOA}, s{sOA}, s{sT1}")
    B_(f"s_lshr_b32 s{sT0}, s{s_j}, 1")
    B_(f"s_and_b32 s{sT0}, s{sT0}, 3")
    B_(f"s_lshl_b32 s{sT0}, s{sT0}, 5")
    B_(f"s_lshl_b32 s{sT1}, s{s_i}, 7")
    B_(f"s_add_u32 s{sT0}, s{sT0}, s{sT1}")
    B_(f"s_and_b32 s{sT1}, s{s_w}, 1")
    B_(f"s_lshl_b32 s{sT1}, s{sT1}, 4")
    B_(f"s_add_u32 s{sT0}, s{sT0}, s{sT1}")
    B_(f"s_mul_i32 s{sO8}, s{sT0}, 1152")
    B_(f"s_lshr_b32 s{sT0}, s{s_j}, 3")
    B_(f"s_lshl_b32 s{sT0}, s{sT0}, 6")
    B_(f"s_add_u32 s{sO8}, s{sO8}, s{sT0}")
    B_(f"s_and_b32 s{sT0}, s{s_j}, 1")
    B_(f"s_lshl_b32 s{sT0}, s{sT0}, 5")
    B_(f"s_add_u32 s{sO8}, s{sO8}, s{sT0}")
    B_(f"s_lshr_b32 s{sT0}, s{s_w}, 1")
    B_(f"s_lshl_b32 s{sT0}, s{sT0}, 3")
    B_(f"s_add_u32 s{sO8}, s{sO8}, s{sT0}")
    B_(f"s_add_u32 s{sO8}, s{sO8}, 1024")

    NS = 27
    def seq(parts):
        out = []
        for k, a0, a1 in parts: out += [(k, x) for x in range(a0, a1)]
        assert len(out) == 18
        return out
    own = seq([(0, 0, 18)])
    E1 = seq([(1, 0, 8), (2, 0, 8), (3, 0, 2)]); E2 = seq([(3, 2, 8), (1, 8, 12), (2, 8, 12), (3, 8, 12)])
    LT = seq([(1, 12, 18), (2, 12, 18), (3, 12, 18)])
    P2 = [("8", own), ("A", own), ("B", own), ("A", E1), ("A", E2), ("B", E1), ("B", E2), ("A", LT), ("B", LT)]
    oloc = {}
    for n_, (k, kp) in enumerate(E1): oloc[(k, kp)] = 176 + 4*n_
    for n_, (k, kp) in enumerate(E2): oloc[(k, kp)] = 0 + 4*n_
    for n_, (k, kp) in enumerate(LT): oloc[(k, kp)] = 72 + 4*n_

    def dma_items(s):
        slot = slot_of(s)
        items = []
        def grp(pre, d):
            for n_, ins in enumerate(d):
                it = []
                if n_ == 0: it += [("s", p) for p in pre]
                it.append(("dma", ins)); items.append(it)
        if s < 16:
            u, ks = s >> 2, s & 3
            for gi in range(3):
                grp([f"s_add_u32 m0, s{sM1}, {slot*SLOT + gi*4096}",
                     f"s_add_u32 s{sSo}, s{sWoff}, {ks*144*9216 + gi*4*73728 + u*128}"],
                    [f"buffer_load_dwordx4 v{vW+c}, s[{sW}:{sW+3}], s{sSo} offen offset:{c*1024} lds" for c in range(4 if gi < 2 else 1)])
        elif s < 18:
            hs = s - 16
            for gi in range(3):
                grp([f"s_add_u32 m0, s{sM1}, {slot*SLOT + gi*4096}",
                     f"s_add_u32 s{sSo}, s{sHoff}, {hs*288*9216 + gi*4*16*9216}"],
                    [f"buffer_load_dwordx4 v{vH+c}, s[{sW}:{sW+3}], s{sSo} offen offset:{c*1024} lds" for c in range(4 if gi < 2 else 1)])
        else:
            line, sq = P2[s-18]
            for e_ in range(9):
                k, kp = sq[2*e_]
                assert sq[2*e_+1] == (k, kp+1) and kp % 2 == 0
                if line == "8":
                    base = sRA8 if kp < 16 else sRB8; col = 1024
                else:
                    base = (sRA+k) if kp < 16 else (sRB+k); col = 0 if line == "A" else 128
                roff = (kp if kp < 16 else kp-16)*16*1152
                grp([f"s_add_u32 m0, s{sMW}, {slot*SLOT + e_*4096}",
                     f"s_add_u32 s{sSo}, s{base}, {roff + col}"],
                    [f"buffer_load_dwordx4 v{vD}, s[{sD}:{sD+3}], s{sSo} offen lds"])
        return items
    def x_items(L):
        off = (L % 3)*4096
        items = []
        for mg in range(4):
            it = []
            if mg == 0: it += [("s", f"s_add_u32 m0, s{sXM}, {off}"), ("s", f"s_add_u32 s{sSo}, s{sXo}, {L*128}")]
            it.append(("dma", f"buffer_load_dwordx4 v{vXd+mg}, s[{sX}:{sX+3}], s{sSo} offen offset:{mg*1024} lds"))
            items.append(it)
        return items
    def emit_item(it, tag):
        for k, x in it:
            if k == "dma": g.vmem(x, tag)
            else: g.e(x)
    def x_read(t):
        L = t >> 2; off = (L % 3)*4096
        g.lds(f"ds_read_b128 a[{XA+4*t}:{XA+4*t+3}], v{vXr+(t&3)} offset:{off}", ("x", t))
    def pf_stage(T):
        if T < 16:
            u, ks = T >> 2, T & 3
            return [(f"s_add_u32 s{sSl}, s{sPfA}, {u*128 + ks*144*9216}", f"buffer_load_dword v{vDum}, v{vP9}, s[{sW}:{sW+3}], s{sSl} offen {a.pfflag}")]
        hs = T - 16
        return [(f"s_add_u32 s{sSl}, s{sPfB}, {(hs*288 + h2*144)*9216}", f"buffer_load_dword v{vDum}, v{vP9}, s[{sW}:{sW+3}], s{sSl} offen {a.pfflag}") for h2 in range(2)]

    xpf = lambda off: (f"s_movk_i32 s{sSl}, {off}", f"buffer_load_dword v{vDum}, v{vPx}, s[{sX}:{sX+3}], s{sSl} offen {a.pfflag}")
    first_pf = {0: [], 1: [xpf(0)] + pf_stage(0) + pf_stage(1) + [xpf(512)], 2: [xpf(0)] + pf_stage(0), 3: [xpf(0)] + pf_stage(0) + pf_stage(1) + [xpf(512)] + pf_stage(2) + [xpf(640)] + pf_stage(3)}[a.pre]
    second_pf = {0: [], 1: pf_stage(2) + [xpf(640)] + pf_stage(3), 2: pf_stage(1) + [xpf(512)] + pf_stage(2) + [xpf(640)] + pf_stage(3), 3: []}[a.pre]
    for s_, l_ in first_pf: g.e(s_); g.vmem(l_, "pf")
    burst = []
    for L in range(3): burst += [(it, ("x", L)) for it in x_items(L)]
    burst += [(it, ("W", 0)) for it in dma_items(0)]
    si = 0
    per = -(-n_setup_valu // len(burst))
    for (it, tag) in burst:
        emit_item(it, tag)
        for _ in range(per):
            if si < n_setup_valu: g.e(setup[si]); si += 1
    while si < len(setup): g.e(setup[si]); si += 1
    g.e(f"s_cmp_lg_u32 s{s_w}, 0")
    g.e(f"s_cselect_b64 vcc, -1, 0")
    for s_, l_ in second_pf: g.e(s_); g.vmem(l_, "pf")
    far = []
    for T in range(a.farT, 18): far += pf_stage(T)
    for z in range(9):
        far.append((f"s_add_u32 s{sSl}, s{sPfD}, {z*9*128}", f"buffer_load_dword v{vDum}, v{vP9d}, s[{sD}:{sD+3}], s{sSl} offen {a.pfdflag}"))
    g.e(f"s_or_b32 s{sT0}, s{s_w}, s2")
    g.e(f"s_cmp_lg_u32 s{sT0}, 0")
    g.e("s_cbranch_scc1 NOTOK")
    g.e(f"s_lshl_b32 s{sT0}, s4, 3")
    g.e(f"s_or_b32 s{sT0}, s{sT0}, 8")
    g.e(f"v_mov_b32 v{POLL+4}, s{sT0}")
    g.vmem(f"buffer_store_dword v{POLL+4}, off, s[{sG}:{sG+3}], 0 sc1", "tokst", only0=True)
    g.lab("NOTOK")
    if a.prostamp: stamp("issued")
    for L in range(3):
        g.wait_vm(("x", L))
        if a.prostamp and L == 0: stamp("x0")
        for t in range(4*L, 4*L+4): x_read(t)
    g.wait_lg_all()
    if a.prostamp: stamp("x2")

    mf = []
    for s in range(NS):
        slot = slot_of(s)
        if s < 16:
            u, ks = s >> 2, s & 3
            for kt in range(9):
                t = 9*ks + kt
                for mt in range(2):
                    for ft in range(2):
                        acc = ACC[u & 1] + (mt*2+ft)*16
                        im = mt*18432 + kt*2048
                        mf.append((s, acc, vA+2*slot+ft, im, im+512, f"a[{XA+4*t}:{XA+4*t+3}]", t == 0, ("x", t) if u == 0 else None, None))
        elif s < 18:
            hs = s - 16
            for kt in range(18):
                t = 18*hs + kt
                for mt in range(2):
                    acc = ACC[0] + mt*32
                    im = mt*18432 + kt*1024
                    mf.append((s, acc, vAH+hs, im, im+256, f"a[{XA+4*t}:{XA+4*t+3}]", t == 0, None, None))
        else:
            line, sq = P2[s-18]
            for kk, (k, kp) in enumerate(sq):
                for dt in range(2):
                    acc = accof[line][dt]
                    im = kk*2048
                    if k == 0: Bo = f"v[{HR+4*kp}:{HR+4*kp+3}]"; dep = None
                    else: Bo = f"a[{oloc[(k,kp)]}:{oloc[(k,kp)]+3}]"; dep = ("h", k, kp)
                    mf.append((s, acc, vB+2*slot+dt, im, im+1024, Bo, (k == 0 and kp == 0), None, dep))
    NM = len(mf); assert NM == 27*36
    fill = {}
    issue_gap = {}
    def add(gap, fn): fill.setdefault(gap, []).append(fn)
    def addfirst(gap, fn): fill.setdefault(gap, []).insert(0, fn)
    def addi(gap, x): add(gap, (lambda x=x: g.e(x)))
    def addv(gap, x, tag):
        issue_gap[tag] = max(issue_gap.get(tag, -1), gap)
        add(gap, (lambda x=x, tag=tag: g.vmem(x, tag)))
    LDF, STF = a.ldflag, a.stflag
    for n_, x in enumerate(late): addi(0 + n_//2, x)
    late_end = (len(late)-1)//2
    cad = a.cad
    order = [("W", 1, -LA), ("x", 3, -LA), ("x", 4, -LA), ("W", 2, -LA), ("x", 5, -LA), ("x", 6, 44), ("W", 3, 37), ("x", 7, 56),
             ("x", 8, 80), ("W", 4, 73), ("W", 5, 109), ("W", 6, 145), ("W", 7, 145)]
    gq = -LA
    startup_end = {}
    for kind, idn, avail in order:
        gq = max(gq, avail)
        its = dma_items(idn) if kind == "W" else x_items(idn)
        if kind == "x" and idn >= 6:
            add(gq, lambda L=idn: g.wait_lg(("x", 4*(L-3)+3)))
        for it in its:
            add(gq, lambda it=it, tag=(kind, idn): emit_item(it, tag)); gq += cad
        startup_end[(kind, idn)] = gq - cad
    sys.stderr.write(f"startup: {startup_end}\n")
    rdg = {3: 38, 4: 48, 5: 72, 6: 84, 7: 104, 8: 116}
    for L, g0 in rdg.items():
        assert g0 > startup_end[("x", L)], (L, g0)
        add(g0, lambda L=L: g.wait_vm(("x", L)))
        for t in range(4*L, 4*L+4): add(g0 + (t & 3), lambda t=t: x_read(t))
    pre_F = {144: [lambda: g.wait_lg(("x", 35))]}
    def epi1(tiles, start, tag, per, stgaps=None):
        items = []
        for (gacc, uacc, kap) in tiles:
            for tt in range(2):
                for n_ in range(4):
                    r = 8*tt + 2*n_
                    items.append(("v", f"v_max_f32 v{gacc+r}, 0, v{gacc+r}"))
                    items.append(("v", f"v_max_f32 v{gacc+r+1}, 0, v{gacc+r+1}"))
                    items.append(("v", f"v_mul_f32 v{gacc+r}, v{gacc+r}, v{uacc+r}"))
                    items.append(("v", f"v_mul_f32 v{gacc+r+1}, v{gacc+r+1}, v{uacc+r+1}"))
                    items.append(("v", f"v_cvt_pk_bf16_f32 v{HR+4*(kap+tt)+n_}, v{gacc+r}, v{gacc+r+1}"))
                kp = kap + tt
                items.append(("s", f"s_add_u32 s{sSt}, s{sHS}, {kp*1024}"))
                items.append(("st", f"buffer_store_dwordx4 v[{HR+4*kp}:{HR+4*kp+3}], v{vL16}, s[{sP}:{sP+3}], s{sSt} offen {STF}"))
        gp = start; cnt = 0
        for (k, x) in items:
            if k == "st":
                if stgaps:
                    sg = max(gp, stgaps.pop(0)); addi(sg, pend_s); addv(sg, x, tag)
                else: addi(gp, pend_s); addv(gp, x, tag)
            elif k == "s": pend_s = x
            else:
                if not a.noepi: addi(gp, x)
            if k == "v":
                cnt += 1
                if cnt % per == 0: gp += 1
        return gp
    for u in range(4):
        base = ACC[u & 1]
        sg = None
        if u < 3 and a.hs0 > 0: sg = [36*(a.hs0 + u) + 19 + 2*z for z in range(4)]
        last = epi1([(base, base+32, 4*u), (base+16, base+48, 4*u+2)], 36*4*(u+1) + 5, ("hst", u), a.vpg, sg)
        if u == 3: assert last <= 36*18 + 24, last
    last = epi1([(ACC[0], ACC[0]+32, 16)], 36*18 + 5, ("hst", 4), 2)
    assert last < 36*18 + 32 - 2, last
    def epi2(line, start, per=2):
        items = []
        for dt in range(2):
            base = accof[line][dt]
            for hf in range(2):
                st = TMP + 4*(dt*2+hf)
                for n_ in range(4):
                    r = hf*8 + 2*n_
                    items.append(("v", f"v_cvt_pk_bf16_f32 v{st+n_}, v{base+r}, v{base+r+1}"))
                if line == "8": off = f"s{sP8}, {(dt*8+hf)*16384}"
                else: off = f"s{sPA}, {(0 if line=='A' else 65536) + (dt*8+hf)*4096}"
                items.append(("v", f"s_add_u32 s{sSt}, {off}"))
                items.append(("st", f"buffer_store_dwordx4 v[{st}:{st+3}], v{vL16}, s[{sP}:{sP+3}], s{sSt} offen sc1"))
        for n_, (k, x) in enumerate(items):
            if k == "st": addv(start + n_//per, x, ("pst", line))
            else: addi(start + n_//per, x)
        return start + (len(items)-1)//per
    epi2("8", 36*19 + a.p8gap)
    epi2("A", 36*26 + 5)
    windows = {1: [], 2: [], 3: [], 4: []}
    for s in range(5, NS-3): windows[s] = [s+3]
    for s, lst in windows.items():
        its = []
        for T in lst: its += [(it, ("W", T)) for it in dma_items(T)]
        step = a.dstep if (len(lst) == 1 and s > 1) else 1
        for n_, (it, tag) in enumerate(its):
            add(36*s + 1 + n_*step, lambda it=it, tag=tag: emit_item(it, tag))
    if a.pf:
        early = [(3, pf_stage(4)[0]), (30, pf_stage(5)[0]), (56, pf_stage(6)[0]), (80, pf_stage(7)[0])]
        for gp, (s_, l_) in early:
            if a.pfearly: addi(gp, s_); addv(gp, l_, "pf")
        st_ = a.far0; i_ = 0
        while i_ < len(far):
            cnt = a.pfrate if not a.pfalt else (a.pfrate + (st_ & 1))
            for z in range(cnt):
                if i_ < len(far):
                    s_, l_ = far[i_]; i_ += 1
                    gp = 36*st_ + a.pfgap + z
                    addi(gp, s_); addv(gp, l_, "pf")
            st_ += 1
        sys.stderr.write(f"far prefetch ends in stage {st_-1}\n")
    lab = [0]
    def w0(fn):
        lab[0] += 1; L_ = f"W0_{lab[0]}"
        g.e(f"s_cbranch_vccnz {L_}"); fn(); g.lab(L_)
    FINAL = 5
    def publish(level):
        def f():
            g.e(f"s_add_u32 s{sTl}, s{sTok}, {level}")
            g.e(f"v_mov_b32 v{POLL+4}, s{sTl}")
            dst = sFPw if level == FINAL else sFHw
            g.vmem(f"buffer_store_dword v{POLL+4}, off, s[{sP}:{sP+3}], s{dst} sc1", ("pub", level), only0=True)
        w0(f)
    slow = []
    def poll_ins(level):
        if level == 0: return f"buffer_load_dword v{POLL}, off, s[{sG}:{sG+3}], 0 sc1"
        if level == 4: return f"buffer_load_dwordx4 v[{POLL}:{POLL+3}], v{vFl}, s[{sP}:{sP+3}], s{sFHi} offen sc1"
        base = sFP if level == FINAL else sFH
        return f"buffer_load_dwordx4 v[{POLL}:{POLL+3}], off, s[{sP}:{sP+3}], s{base} sc1"
    def poll(level): w0(lambda: g.vmem(poll_ins(level), ("poll", level), only0=True))
    def check_regs(level):
        if level == 0:
            g.e(f"v_readfirstlane_b32 s{sTok}, v{POLL}")
            g.e("s_nop 0")
            g.e(f"s_cmp_lg_u32 s{sTok}, 0")
            return
        g.e(f"s_add_u32 s{sTl}, s{sTok}, {level}")
        for k in range(4): g.e(f"v_subrev_u32 v{POLL+k}, s{sTl}, v{POLL+k}")
        g.e(f"v_or_b32 v{POLL}, v{POLL}, v{POLL+1}")
        g.e(f"v_or_b32 v{POLL+2}, v{POLL+2}, v{POLL+3}")
        g.e(f"v_or_b32 v{POLL}, v{POLL}, v{POLL+2}")
        g.e(f"v_cmp_gt_u32 s[{sCm}:{sCm+1}], 8, v{POLL}")
        g.e("s_nop 1")
        g.e(f"s_cmp_eq_u64 s[{sCm}:{sCm+1}], -1")
    def check(level):
        def f():
            g.wait_vm0(("poll", level))
            check_regs(level)
            g.e(f"s_cbranch_scc0 SLOW{level}")
            g.lab(f"OK{level}")
        w0(f); slow.append(level)
    def place_loads(lst, gaps):
        assert len(gaps) >= len(lst)
        for (k, kp), gp in zip(lst, gaps):
            d = oloc[(k, kp)]
            addi(gp, f"s_add_u32 s{sSl}, s{sHL+k}, {kp*1024}")
            addv(gp, f"buffer_load_dwordx4 a[{d}:{d+3}], v{vL16}, s[{sP}:{sP+3}], s{sSl} offen {LDF}", ("h", k, kp))
    def gaps_in(stages, per, first=19, step=2):
        return [36*s + first + t*step for s in stages for t in range(per)]
    pub_req = {1: [("hst", 0), ("hst", 1), ("hst", 2)], 3: [("hst", 3), ("hst", 4)], 4: [("pst", "8")]}
    published = {}
    pre_bar = {}
    def before_bar(gap, fn): pre_bar.setdefault(gap, []).append(fn)
    Bg = lambda s: 36*s - LA
    def pubstage(req):
        last = max(issue_gap[t] for t in req) + a.stlat
        s_ = 0
        while Bg(s_) < last: s_ += 1
        return s_
    cs = {lv: pubstage(req) + a.polld for lv, req in pub_req.items()}
    a.c1s, a.c3s, a.c4s = cs[1], cs[3], cs[4]
    assert a.c4s <= 24 and a.c3s <= 23, cs
    if not a.nocheck:
        addfirst(36*3 + 1, lambda: poll(0))
        before_bar(Bg(6), lambda: check(0))
        for lv, st_ in cs.items():
            addfirst(36*st_ + 1, lambda lv=lv: poll(lv))
            before_bar(Bg(st_+1), lambda lv=lv: check(lv))
    eg = [36*a.c1s + 30 + t for t in range(4)]
    st_ = a.c1s + 1
    while len(eg) < 36:
        eg += [36*st_ + 19 + (16*t)//a.hper for t in range(a.hper)]; st_ += 1
    for n_ in range(36):
        dl = (36*21 + 2*n_) if n_ < 18 else (36*22 + 2*(n_-18))
        assert eg[n_] + a.hmin <= dl, ("early load too late", n_)
        if n_ >= 18: assert eg[n_] >= 36*17
    place_loads(E1 + E2, eg[:36])
    sys.stderr.write(f"early loads end at gap {eg[35]} (stage {eg[35]//36})\n")
    lg_ = [36*a.c3s + 30 + t for t in range(4)]
    st_ = a.c3s + 1
    while len(lg_) < 18:
        lg_ += [36*st_ + 19 + (16*t)//a.lper for t in range(a.lper)]; st_ += 1
    for n_ in range(18): assert lg_[n_] + a.hmin <= 36*25 + 2*n_, ("late load too late", n_)
    place_loads(LT, lg_[:18])
    R8 = 32; S8 = 64
    g8l = 36*a.c4s + 30
    for e_ in range(4):
        addi(g8l + e_, f"s_add_u32 s{sSl}, s{sR8l}, {e_*4096}")
        addv(g8l + e_, f"buffer_load_dwordx4 v[{R8+4*e_}:{R8+4*e_+3}], v{vR8}, s[{sP}:{sP+3}], s{sSl} offen sc1", ("r8", e_))
    def sum_items(R, Sm, nsrc, tagf):
        items = []
        for e_ in range(nsrc):
            items.append(("w", tagf(e_)))
            for n_ in range(4):
                r = R + 4*e_ + n_
                if e_ == 0:
                    items.append(("v", f"v_lshlrev_b32 v{Sm+2*n_}, 16, v{r}"))
                    items.append(("v", f"v_and_b32 v{Sm+2*n_+1}, 0xffff0000, v{r}"))
                else:
                    items.append(("v", f"v_lshlrev_b32 v{Sm+8}, 16, v{r}"))
                    items.append(("v", f"v_and_b32 v{Sm+9}, 0xffff0000, v{r}"))
                    items.append(("v", f"v_add_f32 v{Sm+2*n_}, v{Sm+2*n_}, v{Sm+8}"))
                    items.append(("v", f"v_add_f32 v{Sm+2*n_+1}, v{Sm+2*n_+1}, v{Sm+9}"))
        return items
    it8 = sum_items(R8, S8, 4, lambda e_: ("r8", e_))
    it8 += [("v", "v_nop"), ("v", "v_nop")]
    for n_ in range(4): it8.append(("v", f"v_permlane32_swap_b32 v{S8+n_}, v{S8+4+n_}"))
    for n_ in range(4): it8.append(("v", f"v_add_f32 v{S8+n_}, v{S8+n_}, v{S8+4+n_}"))
    it8 += [("v", "v_nop"), ("v", "v_nop")]
    for n_ in range(2): it8.append(("v", f"v_permlane16_swap_b32 v{S8+n_}, v{S8+2+n_}"))
    for n_ in range(2): it8.append(("v", f"v_add_f32 v{S8+n_}, v{S8+n_}, v{S8+2+n_}"))
    it8.append(("v", f"v_cvt_pk_bf16_f32 v{S8+4}, v{S8}, v{S8+1}"))
    it8.append(("st", f"buffer_store_dword v{S8+4}, v{vO8}, s[{sO}:{sO+3}], s{sO8} offen"))
    g8 = min(g8l + 40, 36*26 + 4 - len(it8))
    for n_, (k, x) in enumerate(it8):
        gp = g8 + n_
        if k == "w": add(gp, (lambda x=x: g.wait_vm(x)))
        elif k == "st": addv(gp, x, "out8")
        else: addi(gp, x)

    def reads(n_):
        s, acc, bv, i0, i1, Bo, first, xd, dep = mf[n_]
        fr = FR + 4*(n_ % 8)
        g.lds(f"ds_read_b64_tr_b16 a[{fr}:{fr+1}], v{bv} offset:{i0}", ("A", n_))
        g.lds(f"ds_read_b64_tr_b16 a[{fr+2}:{fr+3}], v{bv} offset:{i1}", ("A", n_))
    maxgap = max(fill.keys())
    WG = a.wgrp
    for n_ in range(-LA, NM):
        if n_ >= 36 and n_ % 36 == 0 and (n_//36) in windows:
            for fn in pre_F.get(n_, []): fn()
            if not a.nofbar: g.e("s_barrier")
        if (n_ + LA) % 36 == 0 and n_ + LA < NM:
            s = (n_ + LA)//36
            g.wait_vm(("W", s))
            for lv, req in pub_req.items():
                if lv not in published and all(g.has(t) and issue_gap[t] + a.stlat <= n_ for t in req):
                    g.wait_vm(*req)
            for fn in pre_bar.get(n_, []): fn()
            g.e("s_barrier")
            if s in a.stlist: stamp(f"B{s}")
            for lv, req in pub_req.items():
                if lv not in published and all(g.has(t) and g.vm_done(t) for t in req):
                    published[lv] = s
                    g.c(f"publish level {lv} at B{s}")
                    if not a.nocheck: publish(lv)
        for fn in fill.get(n_, []): fn()
        if n_ + LA < NM: reads(n_ + LA)
        if 0 <= n_ < NM:
            s, acc, bv, i0, i1, Bo, first, xd, dep = mf[n_]
            if n_ % WG == 0:
                hi = min(n_ + WG - 1, NM - 1)
                for m_ in range(n_, hi + 1):
                    if mf[m_][8] is not None: g.wait_vm(mf[m_][8])
                for m_ in range(n_, hi + 1):
                    if mf[m_][7] is not None: g.wait_lg(mf[m_][7])
                g.wait_lg(("A", hi))
            fr = FR + 4*(n_ % 8)
            C = "0" if first else f"v[{acc}:{acc+15}]"
            g.e(f"v_mfma_f32_32x32x16_bf16 v[{acc}:{acc+15}], a[{fr}:{fr+3}], {Bo}, {C}")
    sys.stderr.write(f"published: {published}\n")
    for lv in cs: assert published[lv] <= cs[lv], f"poll {lv} placed before own publish"
    for n_ in range(NM, maxgap+1):
        for fn in fill.get(n_, []): fn()
    fill.clear()
    if not a.nofix: stamp("mfma_end")
    g.e("s_nop 7"); g.e("s_nop 7")
    epi2("B", 0, per=1000)
    for fn in fill[0]: fn()
    g.wait_vm_all()
    g.e("s_barrier")
    if not a.nofix: stamp("pub")
    if not a.nocheck:
        def fin():
            g.e(f"s_add_u32 s{sTl}, s{sTok}, {FINAL}")
            g.e(f"v_mov_b32 v{POLL+4}, s{sTl}")
            g.e(f"buffer_store_dword v{POLL+4}, off, s[{sP}:{sP+3}], s{sFPw} sc1")
            g.e(f"s_mov_b32 s{sSpin}, 0")
            g.lab("FINAL_LOOP")
            g.e(poll_ins(FINAL))
            g.e("s_waitcnt vmcnt(0)")
            check_regs(FINAL)
            g.e("s_cbranch_scc1 FINAL_GO")
            g.e(f"s_add_u32 s{sSpin}, s{sSpin}, 1")
            g.e(f"s_cmp_lt_u32 s{sSpin}, {a.spinmax}")
            g.e("s_cbranch_scc1 FINAL_LOOP")
            g.lab("FINAL_GO")
        w0(fin)
        g.e("s_barrier")
    if not a.nofix: stamp("go")
    RA = 32
    for li in range(2):
        g.e(f"s_add_u32 s{sSl}, s{sRAl}, {li*65536}")
        for q_ in range(4):
            r = RA + 16*li + 4*q_
            g.vmem(f"buffer_load_dwordx4 v[{r}:{r+3}], v{vL16}, s[{sP}:{sP+3}], s{sSl} offen offset:{q_*1024} sc1", ("ra", li, q_))
    for li in range(2):
        Sm = 64 + 16*li
        for k, x in sum_items(RA + 16*li, Sm, 4, lambda e_, li=li: ("ra", li, e_)):
            if k == "w": g.wait_vm(x)
            else: g.e(x)
        for n_ in range(4): g.e(f"v_cvt_pk_bf16_f32 v{Sm+12+n_}, v{Sm+2*n_}, v{Sm+2*n_+1}")
        g.e("s_nop 1")
        g.e(f"v_permlane32_swap_b32 v{Sm+12}, v{Sm+14}")
        g.e(f"v_permlane32_swap_b32 v{Sm+13}, v{Sm+15}")
        g.e(f"s_add_u32 s{sSt}, s{sOA}, {li*128}")
        g.vmem(f"buffer_store_dwordx4 v[{Sm+12}:{Sm+15}], v{vO}, s[{sO}:{sO+3}], s{sSt} offen", ("out", li))
    if a.stamps:
        g.e("s_waitcnt vmcnt(0)")
        g.e(f"s_memrealtime s[12:13]")
        g.e(f"s_memtime s[14:15]")
        g.e("s_waitcnt lgkmcnt(0)")
        g.e(f"s_cmp_lg_u32 s{s_w}, 0")
        g.e("s_cbranch_scc1 K1_END")
        g.e(f"s_add_u32 s8, s{sWS}, {STAMP_OFF}")
        g.e(f"s_addc_u32 s9, s{sWS+1}, 0")
        g.e(f"s_lshl_b32 s10, s2, 7")
        g.e("s_add_u32 s8, s8, s10")
        g.e("s_addc_u32 s9, s9, 0")
        order = [4, 12, 6, 14] + ([0] if a.prostamp else []) + [stamp_regs[k][0] for k in range(len(stamp_used))]
        g.e("v_mov_b32 v1, 0")
        for n_, r in enumerate(order):
            g.e(f"v_mov_b32 v2, s{r}")
            g.e(f"v_mov_b32 v3, s{r+1}")
            g.e(f"global_store_dwordx2 v1, v[2:3], s[8:9] offset:{n_*8}")
            g.e("s_nop 1")
        g.e("v_mov_b32 v2, 0"); g.e("v_mov_b32 v3, 0")
        for n_ in range(len(order), 16):
            g.e(f"global_store_dwordx2 v1, v[2:3], s[8:9] offset:{n_*8}")
        sys.stderr.write("stamps: " + " ".join(stamp_used) + "\n")
    g.lab("K1_END")
    g.e("s_endpgm")
    for lv in slow:
        g.lab(f"SLOW{lv}")
        g.e(f"s_mov_b32 s{sSpin}, 0")
        g.lab(f"SLOWL{lv}")
        g.e("s_sleep 1")
        g.e(poll_ins(lv))
        g.e("s_waitcnt vmcnt(0)")
        check_regs(lv)
        g.e(f"s_cbranch_scc1 OK{lv}")
        g.e(f"s_add_u32 s{sSpin}, s{sSpin}, 1")
        g.e(f"s_cmp_lt_u32 s{sSpin}, {a.spinmax}")
        g.e(f"s_cbranch_scc1 SLOWL{lv}")
        g.e(f"s_branch OK{lv}")
    return g.text()

def kd(name, vg, acc, sg):
    return f""".p2align 6
.amdhsa_kernel {name}
  .amdhsa_next_free_vgpr {vg}
  .amdhsa_next_free_sgpr {sg}
  .amdhsa_accum_offset {acc}
  .amdhsa_group_segment_fixed_size 0
  .amdhsa_kernarg_size 56
  .amdhsa_user_sgpr_count 2
  .amdhsa_user_sgpr_kernarg_segment_ptr 1
  .amdhsa_system_sgpr_workgroup_id_x 1
.end_amdhsa_kernel
"""
def main():
    p = argparse.ArgumentParser()
    p.add_argument("-o", default="standalone__glu_gated_reglu__prompt.s")
    for nm, dv in (("la", 7), ("vpg", 1), ("dstep", 2), ("stamps", 0), ("spinmax", 200000), ("nocheck", 0), ("nofix", 0),
                   ("pf", 1), ("pd", 6), ("pfgap", 19), ("pfd", 6), ("c1s", 16), ("hper", 7), ("c2s", 17), ("c3s", 21), ("c4s", 23),
                   ("p8gap", 19), ("pre", 1), ("polld", 1), ("hmin", 16), ("lper", 7), ("farT", 15), ("far0", 2), ("pfalt", 1), ("pfearly", 1), ("pfprobe", -1), ("cad", 2), ("noepi", 0), ("nofbar", 0), ("stlat", 38), ("hs0", 12), ("pf0", 2), ("pfrate", 1), ("x3gap", 62), ("prostamp", 0), ("dbgtime", 0), ("wgrp", 4), ("x2gap", 20)):
        p.add_argument("--" + nm, type=int, default=dv)
    p.add_argument("--pfflag", default="")
    p.add_argument("--pfdflag", default="")
    p.add_argument("--stflag", default="sc1")
    p.add_argument("--ldflag", default="sc1")
    p.add_argument("--stlist", default="1,16,18,21,25")
    a = p.parse_args()
    a.stlist = [int(x) for x in a.stlist.split(",")]
    out = f"""; GLU (ReGLU) fused persistent kernel
; @launch grid=(256,1,1) block=(256,1,1) lds=163840
.amdgcn_target "amdgcn-amd-amdhsa--gfx950"
.text
.globl {KNAME}
.p2align 8
.type {KNAME},@function
""" + gen(a) + '.section .rodata,"a"\n' + kd(KNAME, 512, 256, 102)
    open(a.o, "w").write(out)
main()
```

```python
import sys, argparse

class G:
    def __init__(self):
        self.L = []; self.vm = []; self.lg = []; self.vdone = -1; self.ldone = -1
    def e(self, s): self.L.append("    " + s)
    def lab(self, s): self.L.append(s + ":")
    def c(self, s): self.L.append("    ; " + s)
    def vmem(self, s, tag, only0=False): self.e(s); self.vm.append((tag, only0))
    def lds(self, s, tag): self.e(s); self.lg.append(tag)
    def vlast(self, tag):
        for i in range(len(self.vm)-1, -1, -1):
            if self.vm[i][0] == tag: return i
        raise KeyError(tag)
    def has(self, tag): return any(t == tag for t, _ in self.vm)
    def vm_done(self, tag): return self.vlast(tag) <= self.vdone or (self.vm[self.vlast(tag)][1] and tag[0] in ("hst",))
    def wait_vm(self, *tags):
        idx = max(self.vlast(t) for t in tags)
        if idx <= self.vdone: return
        if all(self.vm[self.vlast(t)][1] for t in tags): return
        n = sum(1 for t, o in self.vm[idx+1:] if not o); assert n <= 63, n
        self.e(f"s_waitcnt vmcnt({n})"); self.vdone = idx
    def wait_vm0(self, tag):
        idx = self.vlast(tag)
        if idx <= self.vdone: return
        n = len(self.vm) - 1 - idx
        self.e(f"s_waitcnt vmcnt({min(n,63)})")
    def wait_vm_all(self):
        self.e("s_waitcnt vmcnt(0)"); self.vdone = len(self.vm) - 1
    def wait_lg(self, tag):
        idx = None
        for i in range(len(self.lg)-1, -1, -1):
            if self.lg[i] == tag: idx = i; break
        assert idx is not None, tag
        if idx <= self.ldone: return
        n = len(self.lg) - 1 - idx; assert n <= 15, (tag, n)
        self.e(f"s_waitcnt lgkmcnt({n})"); self.ldone = idx
    def wait_lg_all(self):
        self.e("s_waitcnt lgkmcnt(0)"); self.ldone = len(self.lg) - 1
    def text(self): return "\n".join(self.L) + "\n"

SLOT = 36864
XR0, XRW = 110592, 13312
NX, NW = 2359296, 5308416
H_OFF = 0
H_SZ = 16*16*4*18432
PA_OFF = H_SZ
PA_SZ = 16*4*2*16*4*1024
P8_OFF = PA_OFF + PA_SZ
P8_SZ = 16*16*16*1024
FH_OFF = P8_OFF + P8_SZ
FP_OFF = FH_OFF + 64*128
WS_USED = FP_OFF + 64*128
STAMP_OFF = 0x0F000000
KNAME = "standalone__glu_gated_reglu__prompt_kernel"
def slot_of(s): return s if s < 3 else (s + 1) % 4

def srd(lo, hi, d, size):
    return [f"s_mov_b32 s{d}, s{lo}", f"s_and_b32 s{d+1}, s{hi}, 0xffff", f"s_mov_b32 s{d+2}, {size}", f"s_mov_b32 s{d+3}, 0x00020000"]

def gen(a):
    g = G()
    LA = a.la
    sX, sW, sD, sP, sO, sG = 8, 12, 16, 20, 24, 28
    KA = 88
    n = [32]
    def S(cnt=1, al=1):
        while n[0] % al: n[0] += 1
        r = n[0]; n[0] += cnt; return r
    s_w, s_i, s_j, s_q, s_r = S(), S(), S(), S(), S()
    sWoff, sHoff, sM1, sMW = S(), S(), S(), S()
    sRA, sRB = S(4), S(4)
    sRA8, sRB8 = S(), S()
    sHL = S(4); sHS = sHL
    sPX0, sPX1, sP8, sRAl, sR8l = S(), S(), S(), S(), S()
    sDX, sP8b, sPY0 = 3, 0, 1
    sOA, sO8 = S(), S()
    sSo, sSt, sSl, sXo, sXM = S(), S(), S(), S(), S()
    sT0, sT1, sT2, sT3 = S(), S(), S(), S()
    sSpin = S()
    sTok, sFH, sFHi, sFP, sFHw, sFPw, sTl = S(), S(), S(), S(), S(), S(), S()
    sPfA, sPfB, sPfD = S(), S(), S()
    sCm = S(2, 2)
    sWS = S(2, 2)
    assert n[0] <= 90, n[0]
    assert not a.prostamp
    vL16 = 0; vW = 1; vH = 5; vD = 9; vP9 = 10; vO = 11; vO8 = 12; vA = 13; vAH = 21; vB = 23; vR8 = 31
    ACC = [32, 96]; HR = 160; TMP = 232; POLL = TMP + 16; vDum = TMP + 21; vFl = TMP + 22; vP9d = TMP + 23
    accof = {"8": (48, 80), "X": (96, 112), "Y": (128, 144)}
    XA = 0; FR = 144
    vXd, vXr = HR, HR + 4
    l3, l7, l4, t0, t1, t2, i2, i3b, c8, fs32, hh, lane = [HR + 8 + k for k in range(12)]
    vPx = HR + 20
    stamp_regs = [(90, 91), (92, 93), (94, 95), (96, 97), (98, 99), (100, 101), (88, 89)]
    stamp_used = []
    def stamp(name):
        if not a.stamps: return
        k = len(stamp_used)
        if k >= len(stamp_regs): return
        r = stamp_regs[k][0]; stamp_used.append(name)
        g.e(f"s_memtime s[{r}:{r+1}]")

    g.lab(KNAME)
    g.e("s_cmp_ge_u32 s2, 256")
    g.e("s_cbranch_scc1 K1_END")
    if a.skew:
        g.e(f"s_and_b32 s3, s2, {a.skewmask}")
        g.e(f"s_cmp_lg_u32 s3, {a.skewval}")
        g.e("s_cbranch_scc1 NOSKEW")
        for _ in range(a.skew): g.e("s_sleep 127")
        g.lab("NOSKEW")
    g.e(f"s_load_dwordx4 s[{KA}:{KA+3}], s[0:1], 0")
    g.e(f"s_load_dwordx4 s[{KA+4}:{KA+7}], s[0:1], 16")
    g.e(f"s_load_dwordx4 s[{KA+8}:{KA+11}], s[0:1], 32")
    g.e(f"s_load_dwordx2 s[{KA+12}:{KA+13}], s[0:1], 48")
    g.e(f"s_memrealtime s[4:5]")
    if a.stamps: g.e(f"s_memtime s[6:7]")
    if a.cpf:
        g.e("s_getpc_b64 s[30:31]")
        g.lab("PCREF")
        g.e("v_lshlrev_b32 v2, 7, v0")
        g.e("v_min_u32 v3, CODE_END-PCREF-4, v2")
        g.e(f"global_load_dword v{vDum}, v3, s[30:31]")
        g.e("v_add_u32 v2, 32768, v2")
        g.e("v_min_u32 v3, CODE_END-PCREF-4, v2")
        g.e(f"global_load_dword v{vDum}, v3, s[30:31]")
        g.vm.append(("cpf", False)); g.vm.append(("cpf", False))
    g.e("v_lshrrev_b32 v1, 6, v0")
    g.e(f"v_and_b32 v{lane}, 63, v0")
    g.e(f"v_readfirstlane_b32 s{s_w}, v1")
    g.e(f"s_and_b32 s{sT0}, s2, 7")
    g.e(f"s_lshr_b32 s{sT1}, s2, 3")
    g.e(f"s_and_b32 s{s_i}, s{sT0}, 1")
    g.e(f"s_lshl_b32 s{s_i}, s{s_i}, 3")
    g.e(f"s_lshr_b32 s{sT2}, s{sT1}, 2")
    g.e(f"s_add_u32 s{s_i}, s{s_i}, s{sT2}")
    g.e(f"s_lshr_b32 s{s_q}, s{sT0}, 1")
    g.e(f"s_and_b32 s{s_r}, s{sT1}, 3")
    g.e(f"s_lshl_b32 s{s_j}, s{s_q}, 2")
    g.e(f"s_add_u32 s{s_j}, s{s_j}, s{s_r}")
    g.e(f"v_lshrrev_b32 v{l3}, 3, v{lane}")
    g.e(f"v_and_b32 v{l7}, 7, v{lane}")
    g.e(f"v_lshrrev_b32 v{l4}, 4, v{lane}")
    g.e(f"v_xor_b32 v{t0}, v{l7}, v{l4}")
    g.e(f"v_mul_u32_u24 v{t1}, 1152, v{l3}")
    for mg in range(4):
        g.e(f"v_xor_b32 v{t2}, {4*(mg&1)}, v{t0}")
        g.e(f"v_lshl_add_u32 v{t2}, v{t2}, 4, v{t1}")
        g.e(f"v_add_u32 v{vXd+mg}, {mg*8192}, v{t2}")
    g.e(f"s_lshl_b32 s{sT0}, s{s_i}, 7")
    g.e(f"s_lshl_b32 s{sT1}, s{s_w}, 5")
    g.e(f"s_add_u32 s{sT0}, s{sT0}, s{sT1}")
    g.e(f"s_mul_i32 s{sXo}, s{sT0}, 1152")
    g.e(f"s_mul_i32 s{sXM}, s{s_w}, {XRW}")
    g.e(f"s_add_u32 s{sXM}, s{sXM}, {XR0}")
    def rows(jreg, dA, dB):
        return [f"s_and_b32 s{sT0}, s{jreg}, 1", f"s_mul_i32 s{sT1}, s{jreg}, 288", f"s_lshl_b32 s{sT2}, s{sT0}, 5",
                f"s_add_u32 s{dA}, s{sT1}, s{sT2}", f"s_xor_b32 s{sT2}, s{sT0}, 1", f"s_lshl_b32 s{sT2}, s{sT2}, 8",
                f"s_add_u32 s{dB}, s{sT1}, s{sT2}"]
    for x in rows(s_j, sRA8, sRB8): g.e(x)
    g.e(f"v_and_b32 v{t0}, 1, v{l4}")
    g.e(f"v_lshlrev_b32 v{t0}, 2, v{t0}")
    g.e(f"v_xor_b32 v{t0}, v{t0}, v{l7}")
    g.e(f"v_lshlrev_b32 v{t0}, 4, v{t0}")
    g.e(f"v_mul_u32_u24 v{t1}, 9216, v{l3}")
    g.e(f"v_add_u32 v{t1}, v{t1}, v{t0}")
    for c in range(4): g.e(f"v_add_u32 v{vW+c}, {c*(73728-1024)}, v{t1}")
    g.e(f"v_mul_u32_u24 v{t1}, 1152, v{l3}")
    g.e(f"v_add_u32 v{vD}, v{t1}, v{t0}")
    g.e(f"s_mul_i32 s{sM1}, s{s_w}, 9216")
    g.e(f"s_and_b32 s{sT0}, s{s_w}, 1")
    g.e(f"s_mul_i32 s{sT1}, s{sT0}, {72*9216}")
    g.e(f"s_lshl_b32 s{sPfA}, s{sRA8}, 1")
    g.e(f"s_add_u32 s{sWoff}, s{sT1}, s{sPfA}")
    g.e(f"s_and_b32 s{sT0}, s{s_i}, 7")
    g.e(f"s_mul_i32 s{sT1}, s{sT0}, 18")
    g.e(f"s_and_b32 s{sT2}, s{s_w}, 1")
    g.e(f"s_mul_i32 s{sT2}, s{sT2}, 9")
    g.e(f"s_add_u32 s{sT1}, s{sT1}, s{sT2}")
    g.e(f"v_min_u32 v{vP9d}, 8, v{lane}")
    g.e(f"v_add_u32 v{vP9}, s{sT1}, v{vP9d}")
    g.e(f"v_mul_u32_u24 v{vP9}, 9216, v{vP9}")
    g.e(f"v_lshlrev_b32 v{vP9d}, 7, v{vP9d}")
    g.e(f"s_lshl_b32 s{sPfB}, s{sRB8}, 1")
    g.e(f"s_and_b32 s{sT3}, s{s_w}, 1")
    g.e(f"s_mul_i32 s{sT1}, s{sT3}, {144*9216}")
    g.e(f"s_add_u32 s{sHoff}, s{sT1}, s{sPfB}")
    g.e(f"s_and_b32 s{sPfB}, s{sPfB}, 0xffffff80")
    g.e(f"s_lshl_b32 s{sT0}, s{sT0}, 2")
    g.e(f"s_add_u32 s{sT0}, s{sT0}, s{s_r}")
    g.e(f"s_lshl_b32 s{sT0}, s{sT0}, 2")
    g.e(f"s_add_u32 s{sT0}, s{sT0}, s{s_w}")
    g.e(f"s_mul_i32 s{sT0}, s{sT0}, {81*128}")
    g.e(f"s_mul_i32 s{sT1}, s{s_q}, {1152*1152}")
    g.e(f"s_add_u32 s{sPfD}, s{sT0}, s{sT1}")
    g.e(f"s_lshl_b32 s{sT0}, s{s_i}, 7")
    g.e(f"s_lshl_b32 s{sT1}, s{s_r}, 5")
    g.e(f"s_add_u32 s{sT0}, s{sT0}, s{sT1}")
    g.e(f"s_lshl_b32 s{sT1}, s{s_w}, 3")
    g.e(f"s_add_u32 s{sT0}, s{sT0}, s{sT1}")
    g.e(f"v_add_u32 v{vPx}, s{sT0}, v{l3}")
    g.e(f"v_mul_u32_u24 v{vPx}, 1152, v{vPx}")
    g.e(f"v_and_b32 v{t2}, 3, v{lane}")
    g.e(f"v_lshl_add_u32 v{vPx}, v{t2}, 7, v{vPx}")
    g.e("s_waitcnt lgkmcnt(0)")
    if a.prostamp: g.e("s_memtime s[0:1]")
    for x in srd(KA, KA+1, sX, NX): g.e(x)
    g.e(f"s_cmp_lt_u32 s{s_w}, 2")
    g.e(f"s_cselect_b32 s{sT0}, s{KA+2}, s{KA+4}")
    g.e(f"s_cselect_b32 s{sT1}, s{KA+3}, s{KA+5}")
    for x in srd(sT0, sT1, sW, NW): g.e(x)

    setup = []
    A_ = setup.append
    for x in srd(KA+6, KA+7, sD, NW) + srd(KA+12, KA+13, sP, WS_USED) + srd(KA+8, KA+9, sO, NX) + srd(KA+10, KA+11, sG, 256): A_(x)
    if a.stamps or a.dbgtime:
        A_(f"s_mov_b32 s{sWS}, s{KA+12}"); A_(f"s_mov_b32 s{sWS+1}, s{KA+13}")
    A_(f"v_lshrrev_b32 v{hh}, 5, v{lane}")
    A_(f"v_and_b32 v{t0}, 31, v{lane}")
    A_(f"v_mul_u32_u24 v{vO}, 1152, v{t0}")
    A_(f"v_lshl_add_u32 v{vO}, v{hh}, 4, v{vO}")
    A_(f"v_bfe_u32 v{t1}, v{lane}, 1, 3")
    A_(f"v_lshlrev_b32 v{t0}, 7, v{t0}")
    A_(f"v_add_u32 v{t0}, s{sXM}, v{t0}")
    for tt in range(4):
        A_(f"v_add_u32 v{t2}, {2*tt}, v{hh}")
        A_(f"v_xor_b32 v{t2}, v{t2}, v{t1}")
        A_(f"v_lshl_add_u32 v{vXr+tt}, v{t2}, 4, v{t0}")
    A_(f"v_bfe_u32 v{i2}, v{lane}, 2, 2")
    A_(f"v_bfe_u32 v{i3b}, v{lane}, 3, 1")
    A_(f"v_and_b32 v{c8}, 3, v{lane}")
    A_(f"v_lshlrev_b32 v{vFl}, 7, v{c8}")
    A_(f"v_lshlrev_b32 v{c8}, 3, v{c8}")
    A_(f"v_bfe_u32 v{fs32}, v{lane}, 4, 1")
    A_(f"v_lshlrev_b32 v{fs32}, 5, v{fs32}")
    A_(f"v_add_u32 v{c8}, v{c8}, v{fs32}")
    A_(f"v_lshl_add_u32 v{t0}, v{hh}, 3, v{i2}")
    A_(f"v_lshl_add_u32 v{t1}, v{t0}, 7, v{c8}")
    A_(f"v_lshl_add_u32 v{t1}, v{i3b}, 6, v{t1}")
    A_(f"v_xor_b32 v{t2}, 64, v{t1}")
    for sl in range(4):
        A_(f"v_add_u32 v{vA+2*sl}, {sl*SLOT}, v{t1}")
        A_(f"v_add_u32 v{vA+2*sl+1}, {sl*SLOT}, v{t2}")
    A_(f"v_lshl_add_u32 v{t1}, v{t0}, 6, v{c8}")
    A_(f"v_add_u32 v{vAH}, {slot_of(16)*SLOT}, v{t1}")
    A_(f"v_add_u32 v{vAH+1}, {slot_of(17)*SLOT}, v{t1}")
    A_(f"v_lshl_add_u32 v{t0}, v{hh}, 2, v{i2}")
    A_(f"v_lshl_add_u32 v{t1}, v{t0}, 7, v{c8}")
    A_(f"v_lshl_add_u32 v{t1}, v{i3b}, 6, v{t1}")
    A_(f"s_and_b32 s{sT3}, s{s_q}, 1")
    A_(f"s_lshl_b32 s{sT3}, s{sT3}, 6")
    A_(f"v_xor_b32 v{t2}, s{sT3}, v{t1}")
    A_(f"v_xor_b32 v{t1}, 64, v{t2}")
    for sl in range(4):
        A_(f"v_add_u32 v{vB+2*sl}, {sl*SLOT}, v{t1}")
        A_(f"v_add_u32 v{vB+2*sl+1}, {sl*SLOT}, v{t2}")
    n_setup_needed_for_start = len(setup)
    n_setup_pf = len(setup)
    A_(f"v_lshrrev_b32 v{t0}, 2, v{lane}")
    A_(f"v_mul_u32_u24 v{t1}, 9216, v{t0}")
    A_(f"v_and_b32 v{t0}, 3, v{lane}")
    A_(f"v_lshl_add_u32 v{t1}, v{t0}, 4, v{t1}")
    for c in range(4): A_(f"v_add_u32 v{vH+c}, {c*(16*9216-1024)}, v{t1}")
    A_(f"v_and_b32 v{t1}, 15, v{lane}")
    A_(f"v_mul_u32_u24 v{vO8}, 1152, v{t1}")
    A_(f"v_and_b32 v{t2}, 1, v{l4}")
    A_(f"v_lshl_add_u32 v{vO8}, v{t2}, 2, v{vO8}")
    A_(f"v_lshl_add_u32 v{vO8}, v{hh}, 4, v{vO8}")
    A_(f"v_lshlrev_b32 v{vR8}, 10, v{l4}")
    A_(f"v_lshl_add_u32 v{vR8}, v{t1}, 4, v{vR8}")
    A_(f"v_lshlrev_b32 v{vL16}, 4, v{lane}")
    n_setup_valu = len(setup)
    late = []
    B_ = late.append
    B_(f"s_lshl_b32 s{sMW}, s{s_w}, 10")
    for k in range(4):
        B_(f"s_add_u32 s{sT3}, s{s_r}, {k}")
        B_(f"s_and_b32 s{sT3}, s{sT3}, 3")
        B_(f"s_lshl_b32 s{sSt}, s{s_q}, 2")
        B_(f"s_add_u32 s{sT3}, s{sT3}, s{sSt}")
        for x in rows(sT3, sRA+k, sRB+k): B_(x)
        B_(f"s_lshl_b32 s{sT0}, s{s_i}, 4")
        B_(f"s_add_u32 s{sT0}, s{sT0}, s{sT3}")
        B_(f"s_lshl_b32 s{sT0}, s{sT0}, 2")
        B_(f"s_add_u32 s{sT0}, s{sT0}, s{s_w}")
        B_(f"s_mul_i32 s{sHL+k}, s{sT0}, 18432")
    B_(f"s_lshl_b32 s{sT3}, s{s_w}, 3")
    B_(f"s_lshl_b32 s{sSt}, s{s_r}, 8")
    B_(f"s_lshr_b32 s{sT0}, s{s_q}, 1")
    B_(f"s_lshl_b32 s{sT1}, s{sT0}, 7")
    B_(f"s_add_u32 s{sSt}, s{sSt}, s{sT1}")
    B_(f"s_lshl_b32 s{sT1}, s{sT0}, 8")
    B_(f"s_sub_u32 s{sDX}, 128, s{sT1}")
    for r_ in [sRA+k for k in range(4)] + [sRB+k for k in range(4)]:
        B_(f"s_add_u32 s{r_}, s{r_}, s{sT3}")
        B_(f"s_mul_i32 s{r_}, s{r_}, 1152")
        B_(f"s_add_u32 s{r_}, s{r_}, s{sSt}")
    for r_ in (sRA8, sRB8):
        B_(f"s_add_u32 s{r_}, s{r_}, s{sT3}")
        B_(f"s_mul_i32 s{r_}, s{r_}, 1152")
    B_(f"s_lshl_b32 s{sT0}, s{s_i}, 2")
    B_(f"s_add_u32 s{sT0}, s{sT0}, s{s_r}")
    B_(f"s_lshl_b32 s{sT3}, s{sT0}, 7")
    B_(f"s_add_u32 s{sFP}, s{sT3}, {FP_OFF}")
    B_(f"s_lshl_b32 s{sT3}, s{s_q}, 2")
    B_(f"s_add_u32 s{sFPw}, s{sFP}, s{sT3}")
    B_(f"s_lshl_b32 s{sT0}, s{sT0}, 17")
    B_(f"s_lshl_b32 s{sT1}, s{s_w}, 11")
    B_(f"s_add_u32 s{sT0}, s{sT0}, s{sT1}")
    B_(f"s_add_u32 s{sT0}, s{sT0}, {PA_OFF}")
    B_(f"s_lshl_b32 s{sT1}, s{s_q}, 15")
    B_(f"s_add_u32 s{sRAl}, s{sT0}, s{sT1}")
    B_(f"s_lshl_b32 s{sT1}, s{s_q}, 13")
    B_(f"s_add_u32 s{sT0}, s{sT0}, s{sT1}")
    B_(f"s_xor_b32 s{sT1}, s{s_q}, 3")
    B_(f"s_lshl_b32 s{sT1}, s{sT1}, 15")
    B_(f"s_add_u32 s{sPX0}, s{sT0}, s{sT1}")
    B_(f"s_xor_b32 s{sT1}, s{s_q}, 2")
    B_(f"s_lshl_b32 s{sT1}, s{sT1}, 15")
    B_(f"s_add_u32 s{sPX1}, s{sT0}, s{sT1}")
    B_(f"s_xor_b32 s{sT1}, s{s_q}, 1")
    B_(f"s_lshl_b32 s{sT1}, s{sT1}, 15")
    B_(f"s_add_u32 s{sPY0}, s{sT0}, s{sT1}")
    B_(f"s_lshl_b32 s{sT0}, s{s_i}, 4")
    B_(f"s_lshl_b32 s{sT1}, s{s_w}, 1")
    B_(f"s_add_u32 s{sT1}, s{sT0}, s{sT1}")
    B_(f"s_lshl_b32 s{sT1}, s{sT1}, 4")
    B_(f"s_add_u32 s{sT1}, s{sT1}, s{s_j}")
    B_(f"s_lshl_b32 s{sT1}, s{sT1}, 10")
    B_(f"s_add_u32 s{sP8}, s{sT1}, {P8_OFF}")
    B_(f"s_and_b32 s{sT2}, s{s_q}, 1")
    B_(f"s_lshl_b32 s{sT2}, s{sT2}, 17")
    B_(f"s_add_u32 s{sP8b}, s{sP8}, s{sT2}")
    B_(f"s_xor_b32 s{sT2}, s{sT2}, 0x20000")
    B_(f"s_add_u32 s{sP8}, s{sP8}, s{sT2}")
    B_(f"s_add_u32 s{sT3}, s{sT0}, s{s_j}")
    B_(f"s_lshl_b32 s{sT1}, s{sT3}, 14")
    B_(f"s_lshl_b32 s{sT2}, s{s_w}, 8")
    B_(f"s_add_u32 s{sT1}, s{sT1}, s{sT2}")
    B_(f"s_add_u32 s{sR8l}, s{sT1}, {P8_OFF}")
    B_(f"s_lshl_b32 s{sT1}, s{s_i}, 9")
    B_(f"s_add_u32 s{sFHi}, s{sT1}, {FH_OFF}")
    B_(f"s_lshl_b32 s{sT1}, s{s_q}, 7")
    B_(f"s_add_u32 s{sFH}, s{sFHi}, s{sT1}")
    B_(f"s_lshl_b32 s{sT1}, s{s_r}, 2")
    B_(f"s_add_u32 s{sFHw}, s{sFH}, s{sT1}")
    B_(f"s_lshl_b32 s{sT1}, s{s_r}, 8")
    B_(f"s_add_u32 s{sOA}, s{sXo}, s{sT1}")
    B_(f"s_lshl_b32 s{sT1}, s{s_q}, 6")
    B_(f"s_add_u32 s{sOA}, s{sOA}, s{sT1}")
    B_(f"s_lshr_b32 s{sT0}, s{s_j}, 1")
    B_(f"s_and_b32 s{sT0}, s{sT0}, 3")
    B_(f"s_lshl_b32 s{sT0}, s{sT0}, 5")
    B_(f"s_lshl_b32 s{sT1}, s{s_i}, 7")
    B_(f"s_add_u32 s{sT0}, s{sT0}, s{sT1}")
    B_(f"s_and_b32 s{sT1}, s{s_w}, 1")
    B_(f"s_lshl_b32 s{sT1}, s{sT1}, 4")
    B_(f"s_add_u32 s{sT0}, s{sT0}, s{sT1}")
    B_(f"s_mul_i32 s{sO8}, s{sT0}, 1152")
    B_(f"s_lshr_b32 s{sT0}, s{s_j}, 3")
    B_(f"s_lshl_b32 s{sT0}, s{sT0}, 6")
    B_(f"s_add_u32 s{sO8}, s{sO8}, s{sT0}")
    B_(f"s_and_b32 s{sT0}, s{s_j}, 1")
    B_(f"s_lshl_b32 s{sT0}, s{sT0}, 5")
    B_(f"s_add_u32 s{sO8}, s{sO8}, s{sT0}")
    B_(f"s_lshr_b32 s{sT0}, s{s_w}, 1")
    B_(f"s_lshl_b32 s{sT0}, s{sT0}, 3")
    B_(f"s_add_u32 s{sO8}, s{sO8}, s{sT0}")
    B_(f"s_add_u32 s{sO8}, s{sO8}, 1024")

    NS = 27
    def seq(parts):
        out = []
        for k, a0, a1 in parts: out += [(k, x) for x in range(a0, a1)]
        assert len(out) == 18
        return out
    own = seq([(0, 0, 18)])
    E1 = seq([(1, 0, 4), (2, 0, 4), (3, 0, 4), (1, 4, 8), (2, 4, 6)]); E2 = seq([(2, 6, 8), (3, 4, 8), (1, 8, 12), (2, 8, 12), (3, 8, 12)])
    LT = seq([(1, 12, 18), (2, 12, 18), (3, 12, 18)])
    P2 = [("8", own), ("X", own), ("Y", own), ("X", E1), ("X", E2), ("Y", E1), ("Y", E2), ("X", LT), ("Y", LT)]
    oloc = {}
    for n_, (k, kp) in enumerate(E1): oloc[(k, kp)] = 176 + 4*n_
    for n_, (k, kp) in enumerate(E2): oloc[(k, kp)] = 0 + 4*n_
    for n_, (k, kp) in enumerate(LT): oloc[(k, kp)] = 72 + 4*n_

    def dma_items(s):
        slot = slot_of(s)
        items = []
        def grp(pre, d):
            for n_, ins in enumerate(d):
                it = []
                if n_ == 0: it += [("s", p) for p in pre]
                it.append(("dma", ins)); items.append(it)
        if s < 16:
            u, ks = s >> 2, s & 3
            for gi in range(3):
                grp([f"s_add_u32 m0, s{sM1}, {slot*SLOT + gi*4096}",
                     f"s_add_u32 s{sSo}, s{sWoff}, {ks*144*9216 + gi*4*73728 + u*128}"],
                    [f"buffer_load_dwordx4 v{vW+c}, s[{sW}:{sW+3}], s{sSo} offen offset:{c*1024} {a.wflag} lds" for c in range(4 if gi < 2 else 1)])
        elif s < 18:
            hs = s - 16
            for gi in range(3):
                grp([f"s_add_u32 m0, s{sM1}, {slot*SLOT + gi*4096}",
                     f"s_add_u32 s{sSo}, s{sHoff}, {hs*288*9216 + gi*4*16*9216}"],
                    [f"buffer_load_dwordx4 v{vH+c}, s[{sW}:{sW+3}], s{sSo} offen offset:{c*1024} {a.wflag} lds" for c in range(4 if gi < 2 else 1)])
        else:
            line, sq = P2[s-18]
            for e_ in range(9):
                k, kp = sq[2*e_]
                assert sq[2*e_+1] == (k, kp+1) and kp % 2 == 0
                if line == "8":
                    base = sRA8 if kp < 16 else sRB8; col = 1024
                else:
                    base = (sRA+k) if kp < 16 else (sRB+k); col = 0
                roff = (kp if kp < 16 else kp-16)*16*1152
                pre = [f"s_add_u32 m0, s{sMW}, {slot*SLOT + e_*4096}", f"s_add_u32 s{sSo}, s{base}, {roff + col}"]
                if line == "X": pre.append(f"s_add_u32 s{sSo}, s{sSo}, s{sDX}")
                grp(pre, [f"buffer_load_dwordx4 v{vD}, s[{sD}:{sD+3}], s{sSo} offen {a.wflag} lds"])
        return items
    def x_items(L):
        off = (L % 3)*4096
        items = []
        for mg in range(4):
            it = []
            if mg == 0: it += [("s", f"s_add_u32 m0, s{sXM}, {off}"), ("s", f"s_add_u32 s{sSo}, s{sXo}, {L*128}")]
            it.append(("dma", f"buffer_load_dwordx4 v{vXd+mg}, s[{sX}:{sX+3}], s{sSo} offen offset:{mg*1024} {a.xflag} lds"))
            items.append(it)
        return items
    def emit_item(it, tag):
        for k, x in it:
            if k == "dma":
                if a.nodma and tag[0] == "W" and tag[1] >= 3: g.vm.append((tag, True))
                else: g.vmem(x, tag)
            else: g.e(x)
    def x_read(t):
        L = t >> 2; off = (L % 3)*4096
        g.lds(f"ds_read_b128 a[{XA+4*t}:{XA+4*t+3}], v{vXr+(t&3)} offset:{off}", ("x", t))
    def pf_stage(T):
        if T < 16:
            u, ks = T >> 2, T & 3
            return [(f"s_add_u32 s{sSl}, s{sPfA}, {u*128 + ks*144*9216}", f"buffer_load_dword v{vDum}, v{vP9}, s[{sW}:{sW+3}], s{sSl} offen {a.pfflag}")]
        hs = T - 16
        return [(f"s_add_u32 s{sSl}, s{sPfB}, {(hs*288 + h2*144)*9216}", f"buffer_load_dword v{vDum}, v{vP9}, s[{sW}:{sW+3}], s{sSl} offen {a.pfflag}") for h2 in range(2)]

    xpf = lambda off: (f"s_movk_i32 s{sSl}, {off}", f"buffer_load_dword v{vDum}, v{vPx}, s[{sX}:{sX+3}], s{sSl} offen {a.pfflag}")
    if a.pre == 4:
        first_pf = [xpf(128)] + pf_stage(1)
        second_pf = pf_stage(2) + [xpf(640)] + pf_stage(3)
    elif a.pre == 5:
        first_pf = [xpf(128)]
        second_pf = pf_stage(1) + pf_stage(2) + [xpf(640)] + pf_stage(3)
    elif a.pre == 6:
        first_pf = [xpf(128)] + pf_stage(1) + pf_stage(2)
        second_pf = [xpf(640)] + pf_stage(3)
    elif a.pre in (8, 9):
        first_pf = []; second_pf = []
    elif a.pre == 10:
        first_pf = []; second_pf = pf_stage(1) + [xpf(384)]
    elif a.pre == -1:
        first_pf = pf_stage(0); second_pf = []
    elif a.pre == -2:
        first_pf = pf_stage(0) + pf_stage(1); second_pf = []
    elif a.pre == -3:
        first_pf = pf_stage(0); second_pf = pf_stage(1) + pf_stage(2)
    elif a.pre == 7:
        first_pf = [xpf(128)] + pf_stage(1)
        second_pf = []
    else:
        first_pf = {0: [], 1: [xpf(0)] + pf_stage(0) + pf_stage(1) + [xpf(512)], 2: [xpf(0)] + pf_stage(0), 3: [xpf(0)] + pf_stage(0) + pf_stage(1) + [xpf(512)] + pf_stage(2) + [xpf(640)] + pf_stage(3)}[a.pre]
        second_pf = {0: [], 1: pf_stage(2) + [xpf(640)] + pf_stage(3), 2: pf_stage(1) + [xpf(512)] + pf_stage(2) + [xpf(640)] + pf_stage(3), 3: []}[a.pre]
    for s_, l_ in first_pf: g.e(s_); g.vmem(l_, "pf")
    burst = []
    if a.pre in (9, 10):
        burst += [(it, ("x", 0)) for it in x_items(0)]
        burst += [(it, ("W", 0)) for it in dma_items(0)]
        for L in range(1, 3): burst += [(it, ("x", L)) for it in x_items(L)]
    elif a.pre >= 4:
        burst += [(it, ("W", 0)) for it in dma_items(0)]
        for L in range(3): burst += [(it, ("x", L)) for it in x_items(L)]
    else:
        for L in range(3): burst += [(it, ("x", L)) for it in x_items(L)]
        burst += [(it, ("W", 0)) for it in dma_items(0)]
    si = 0
    per = -(-n_setup_valu // len(burst))
    for (it, tag) in burst:
        emit_item(it, tag)
        for _ in range(per):
            if si < n_setup_valu: g.e(setup[si]); si += 1
    while si < len(setup): g.e(setup[si]); si += 1
    g.e(f"s_cmp_lg_u32 s{s_w}, 0")
    g.e(f"s_cselect_b64 vcc, -1, 0")
    for s_, l_ in second_pf: g.e(s_); g.vmem(l_, "pf")
    far = []
    for T in range(a.farT, 18): far += pf_stage(T)
    for z in range(9):
        far.append((f"s_add_u32 s{sSl}, s{sPfD}, {z*9*128}", f"buffer_load_dword v{vDum}, v{vP9d}, s[{sD}:{sD+3}], s{sSl} offen {a.pfdflag}"))
    g.e(f"s_or_b32 s{sT0}, s{s_w}, s2")
    g.e(f"s_cmp_lg_u32 s{sT0}, 0")
    g.e("s_cbranch_scc1 NOTOK")
    g.e(f"s_lshl_b32 s{sT0}, s4, 3")
    g.e(f"s_or_b32 s{sT0}, s{sT0}, 8")
    g.e(f"v_mov_b32 v{POLL+4}, s{sT0}")
    g.vmem(f"buffer_store_dword v{POLL+4}, off, s[{sG}:{sG+3}], 0 sc1", "tokst", only0=True)
    g.lab("NOTOK")
    if a.prostamp: stamp("issued")
    nx0 = 1 if a.pre >= 4 else 3
    for L in range(nx0):
        g.wait_vm(("x", L))
        for t in range(4*L, 4*L+4): x_read(t)
    g.wait_lg_all()

    mf = []
    for s in range(NS):
        slot = slot_of(s)
        if s < 16:
            u, ks = s >> 2, s & 3
            for kt in range(9):
                t = 9*ks + kt
                for mt in range(2):
                    for ft in range(2):
                        acc = ACC[u & 1] + (mt*2+ft)*16
                        im = mt*18432 + kt*2048
                        mf.append((s, acc, vA+2*slot+ft, im, im+512, f"a[{XA+4*t}:{XA+4*t+3}]", t == 0, ("x", t) if u == 0 else None, None))
        elif s < 18:
            hs = s - 16
            for kt in range(18):
                t = 18*hs + kt
                for mt in range(2):
                    acc = ACC[0] + mt*32
                    im = mt*18432 + kt*1024
                    mf.append((s, acc, vAH+hs, im, im+256, f"a[{XA+4*t}:{XA+4*t+3}]", t == 0, None, None))
        else:
            pass
    def p2mf(s, dts):
        line, sq = P2[s-18]; slot = slot_of(s); out = []
        for kk, (k, kp) in enumerate(sq):
            for dt in dts:
                acc = accof[line][dt]
                im = kk*2048
                if k == 0: Bo = f"v[{HR+4*kp}:{HR+4*kp+3}]"; dep = None
                else: Bo = f"a[{oloc[(k,kp)]}:{oloc[(k,kp)]+3}]"; dep = ("h", k, kp)
                out.append((s, acc, vB+2*slot+dt, im, im+1024, Bo, (k == 0 and kp == 0), None, dep))
        return out
    for s in range(18, 23): mf += p2mf(s, (0, 1))
    if a.own == 54:
        mf += p2mf(23, (0,)) + p2mf(24, (0,)) + p2mf(25, (0, 1)) + p2mf(26, (0,)) + p2mf(23, (1,)) + p2mf(24, (1,)) + p2mf(26, (1,))
    elif a.own == 36:
        mf += p2mf(23, (0, 1)) + p2mf(24, (0,)) + p2mf(25, (0, 1)) + p2mf(26, (0,)) + p2mf(24, (1,)) + p2mf(26, (1,))
    else:
        mf += p2mf(23, (0, 1)) + p2mf(24, (0, 1)) + p2mf(25, (0, 1)) + p2mf(26, (0,)) + p2mf(26, (1,))
    first_use = {}
    for n_, m_ in enumerate(mf): first_use.setdefault(m_[0], n_)
    last_acc = {}
    for n_, m_ in enumerate(mf): last_acc[m_[1]] = n_
    first_h = {}
    for n_, m_ in enumerate(mf):
        if m_[8] is not None: first_h.setdefault(m_[8][1:], n_)
    NM = len(mf); assert NM == 27*36
    fill = {}
    issue_gap = {}
    def add(gap, fn): fill.setdefault(gap, []).append(fn)
    def addfirst(gap, fn): fill.setdefault(gap, []).insert(0, fn)
    def addi(gap, x): add(gap, (lambda x=x: g.e(x)))
    def addv(gap, x, tag):
        issue_gap[tag] = max(issue_gap.get(tag, -1), gap)
        if a.nohx and isinstance(tag, tuple) and tag[0] in ("hst", "h"):
            add(gap, (lambda tag=tag: g.vm.append((tag, True)))); return
        add(gap, (lambda x=x, tag=tag: g.vmem(x, tag)))
    LDF, STF = a.ldflag, a.stflag
    for n_, x in enumerate(late): addi(0 + n_//2, x)
    late_end = (len(late)-1)//2
    cad = a.cad
    order = [("W", 1, -LA), ("x", 3, -LA), ("x", 4, -LA), ("W", 2, -LA), ("x", 5, -LA), ("x", 6, 44), ("W", 3, 37), ("x", 7, 56),
             ("x", 8, 80), ("W", 4, 73), ("W", 5, 109), ("W", 6, 145), ("W", 7, 145)]
    gq = -LA
    startup_end = {}
    for kind, idn, avail in order:
        gq = max(gq, avail)
        its = dma_items(idn) if kind == "W" else x_items(idn)
        if kind == "x" and (idn >= 6 or (a.pre >= 4 and idn >= 3)):
            add(gq, lambda L=idn: g.wait_lg(("x", 4*(L-3)+3)))
        for it in its:
            add(gq, lambda it=it, tag=(kind, idn): emit_item(it, tag)); gq += cad
        startup_end[(kind, idn)] = gq - cad
    sys.stderr.write(f"startup: {startup_end}\n")
    rdg = {3: 38, 4: 48, 5: 72, 6: 84, 7: 104, 8: 116}
    if a.pre >= 4: rdg.update({1: a.x1gap, 2: a.x1gap + 12})
    for L, g0 in rdg.items():
        if L >= 3: assert g0 > startup_end[("x", L)], (L, g0)
        add(g0, lambda L=L: g.wait_vm(("x", L)))
        for t in range(4*L, 4*L+4): add(g0 + (t & 3), lambda t=t: x_read(t))
    pre_F = {144: [lambda: g.wait_lg(("x", 35))]}
    def epi1(tiles, start, tag, per, stgaps=None):
        items = []
        for (gacc, uacc, kap) in tiles:
            for tt in range(2):
                for n_ in range(4):
                    r = 8*tt + 2*n_
                    items.append(("v", f"v_max_f32 v{gacc+r}, 0, v{gacc+r}"))
                    items.append(("v", f"v_max_f32 v{gacc+r+1}, 0, v{gacc+r+1}"))
                    items.append(("v", f"v_mul_f32 v{gacc+r}, v{gacc+r}, v{uacc+r}"))
                    items.append(("v", f"v_mul_f32 v{gacc+r+1}, v{gacc+r+1}, v{uacc+r+1}"))
                    items.append(("v", f"v_cvt_pk_bf16_f32 v{HR+4*(kap+tt)+n_}, v{gacc+r}, v{gacc+r+1}"))
                kp = kap + tt
                items.append(("s", f"s_add_u32 s{sSt}, s{sHS}, {kp*1024}"))
                items.append(("st", f"buffer_store_dwordx4 v[{HR+4*kp}:{HR+4*kp+3}], v{vL16}, s[{sP}:{sP+3}], s{sSt} offen {STF}"))
        gp = start; cnt = 0
        for (k, x) in items:
            if k == "st":
                if stgaps:
                    sg = max(gp, stgaps.pop(0)); addi(sg, pend_s); addv(sg, x, tag)
                else: addi(gp, pend_s); addv(gp, x, tag)
            elif k == "s": pend_s = x
            else:
                if not a.noepi: addi(gp, x)
            if k == "v":
                cnt += 1
                if cnt % per == 0: gp += 1
        return gp
    for u in range(4):
        base = ACC[u & 1]
        sg = None
        if u < 2 and a.hs0 > 0: sg = [36*(a.hs0 + u) + 19 + 2*z for z in range(4)]
        last = epi1([(base, base+32, 4*u), (base+16, base+48, 4*u+2)], 36*4*(u+1) + 5, ("hst", u), a.vpg, sg)
        if u == 3: assert last <= 36*18 + 24, last
    last = epi1([(ACC[0], ACC[0]+32, 16)], 36*18 + 5, ("hst", 4), 2)
    assert last < 36*18 + 32 - 2, last
    def epi_tile(base, sdst, stride, tag, start, stg, per=2):
        items = []
        for hf in range(2):
            st = stg + 4*hf
            for n_ in range(4):
                r = hf*8 + 2*n_
                items.append(("v", f"v_cvt_pk_bf16_f32 v{st+n_}, v{base+r}, v{base+r+1}"))
            items.append(("v", f"s_add_u32 s{sSt}, s{sdst}, {hf*stride}"))
            items.append(("st", f"buffer_store_dwordx4 v[{st}:{st+3}], v{vL16}, s[{sP}:{sP+3}], s{sSt} offen sc1"))
        for n_, (k, x) in enumerate(items):
            if k == "st": addv(start + n_//per, x, tag)
            else: addi(start + n_//per, x)
        return start + (len(items)-1)//per
    if a.sent:
        gc = 36*a.clr0 + a.clrgap
        for n_ in range(4): addi(gc - 1, f"v_mov_b32 v{TMP+n_}, -1")
        z = 0
        for sd in (sPX0, sPX1, sPY0):
            for hf in range(2):
                gz = gc + z*a.clrstep
                addi(gz, f"s_add_u32 s{sSt}, s{sd}, {hf*1024}")
                addv(gz, f"buffer_store_dwordx4 v[{TMP}:{TMP+3}], v{vL16}, s[{sP}:{sP+3}], s{sSt} offen sc1", ("clr", 0))
                z += 1
        assert gc > late_end + 2 and gc + 5*a.clrstep < 36*19
    e_ = epi_tile(accof["8"][0], sP8, 16384, ("pst", "8"), 36*19 + a.p8gap, TMP)
    epi_tile(accof["8"][1], sP8b, 16384, ("pst", "8"), e_ + 1, TMP + 8)
    gX = last_acc[accof["X"][1]] + 5
    e_ = epi_tile(accof["X"][0], sPX0, 1024, ("pst", "F"), gX, TMP)
    e_ = epi_tile(accof["X"][1], sPX1, 1024, ("pst", "F"), e_ + 1, TMP + 8)
    gY = max(last_acc[accof["Y"][0]] + 5, e_ + 1)
    eY = epi_tile(accof["Y"][0], sPY0, 1024, ("pst", "F"), gY, TMP)
    windows = {1: [], 2: [], 3: [], 4: []}
    for s in range(5, NS-3): windows[s] = [s+3]
    for s, lst in windows.items():
        its = []
        for T in lst: its += [(it, ("W", T)) for it in dma_items(T)]
        step = a.dstep if (len(lst) == 1 and s > 1) else 1
        if lst and lst[0] in (16, 17): step = a.dsteph
        if lst and lst[0] >= 18: step = a.dstep2
        for n_, (it, tag) in enumerate(its):
            add(36*s + 1 + n_*step, lambda it=it, tag=tag: emit_item(it, tag))
    if a.pf:
        early = [(3, pf_stage(4)[0]), (30, pf_stage(5)[0]), (56, pf_stage(6)[0]), (80, pf_stage(7)[0])]
        for gp, (s_, l_) in early:
            if a.pfearly: addi(gp, s_); addv(gp, l_, "pf")
        st_ = a.far0; i_ = 0
        while i_ < len(far):
            cnt = a.pfrate if not a.pfalt else (a.pfrate + (st_ & 1))
            for z in range(cnt):
                if i_ < len(far):
                    s_, l_ = far[i_]; i_ += 1
                    gp = 36*st_ + a.pfgap + z
                    addi(gp, s_); addv(gp, l_, "pf")
            st_ += 1
        sys.stderr.write(f"far prefetch ends in stage {st_-1}\n")
    lab = [0]
    def w0(fn):
        lab[0] += 1; L_ = f"W0_{lab[0]}"
        g.e(f"s_cbranch_vccnz {L_}"); fn(); g.lab(L_)
    FINAL = 6
    def publish(level):
        def f():
            g.e(f"s_add_u32 s{sTl}, s{sTok}, {level}")
            g.e(f"v_mov_b32 v{POLL+4}, s{sTl}")
            dst = sFPw if level == FINAL else sFHw
            g.vmem(f"buffer_store_dword v{POLL+4}, off, s[{sP}:{sP+3}], s{dst} sc1", ("pub", level), only0=True)
        w0(f)
    slow = []
    def poll_ins(level):
        if level == 0: return f"buffer_load_dword v{POLL}, off, s[{sG}:{sG+3}], 0 sc1"
        if level == 5: return f"buffer_load_dwordx4 v[{POLL}:{POLL+3}], v{vFl}, s[{sP}:{sP+3}], s{sFHi} offen sc1"
        base = sFP if level == FINAL else sFH
        return f"buffer_load_dwordx4 v[{POLL}:{POLL+3}], off, s[{sP}:{sP+3}], s{base} sc1"
    def poll(level): w0(lambda: g.vmem(poll_ins(level), ("poll", level), only0=True))
    def check_regs(level):
        if level == 0:
            g.e(f"v_readfirstlane_b32 s{sTok}, v{POLL}")
            g.e("s_nop 0")
            g.e(f"s_cmp_lg_u32 s{sTok}, 0")
            return
        g.e(f"s_add_u32 s{sTl}, s{sTok}, {level}")
        for k in range(4): g.e(f"v_subrev_u32 v{POLL+k}, s{sTl}, v{POLL+k}")
        g.e(f"v_or_b32 v{POLL}, v{POLL}, v{POLL+1}")
        g.e(f"v_or_b32 v{POLL+2}, v{POLL+2}, v{POLL+3}")
        g.e(f"v_or_b32 v{POLL}, v{POLL}, v{POLL+2}")
        g.e(f"v_cmp_gt_u32 s[{sCm}:{sCm+1}], 8, v{POLL}")
        g.e("s_nop 1")
        g.e(f"s_cmp_eq_u64 s[{sCm}:{sCm+1}], -1")
    def check(level):
        def f():
            g.wait_vm0(("poll", level))
            check_regs(level)
            g.e(f"s_cbranch_scc0 SLOW{level}")
            g.lab(f"OK{level}")
        w0(f); slow.append(level)
    def place_loads(lst, gaps):
        assert len(gaps) >= len(lst)
        for (k, kp), gp in zip(lst, gaps):
            d = oloc[(k, kp)]
            addi(gp, f"s_add_u32 s{sSl}, s{sHL+k}, {kp*1024}")
            addv(gp, f"buffer_load_dwordx4 a[{d}:{d+3}], v{vL16}, s[{sP}:{sP+3}], s{sSl} offen {LDF}", ("h", k, kp))
    def gaps_in(stages, per, first=19, step=2):
        return [36*s + first + t*step for s in stages for t in range(per)]
    pub_req = {1: [("hst", 0)], 2: [("hst", 1)], 3: [("hst", 2)], 4: [("hst", 3), ("hst", 4)], 5: [("pst", "8")] + ([("clr", 0)] if a.sent else [])}
    published = {}
    pre_bar = {}
    def before_bar(gap, fn): pre_bar.setdefault(gap, []).append(fn)
    Bg = lambda s: first_use[s] - LA
    bgaps = {first_use[s_] - LA: s_ for s_ in first_use}
    fgaps = [36*k for k in range(1, NS-3)]
    def chkgap(lv):
        pg = pollgap[lv]
        return min(x for x in list(bgaps) + fgaps if x >= pg + a.rtt)
    def pubstage(req):
        last = max(issue_gap[t] for t in req) + a.stlat
        s_ = 0
        while Bg(s_) < last: s_ += 1
        return s_
    pdl = [int(x) for x in a.pdl.split(",")]
    pollgap = {lv: Bg(pubstage(req)) + pdl[lv-1] for lv, req in pub_req.items()}
    cs = {lv: pubstage(req) for lv, req in pub_req.items()}
    if not a.nocheck:
        addfirst(36*3 + 1, lambda: poll(0))
        before_bar(Bg(6), lambda: check(0))
        for lv in cs:
            addfirst(pollgap[lv], lambda lv=lv: poll(lv))
            before_bar(chkgap(lv), lambda lv=lv: check(lv))
    chk = {lv: chkgap(lv) + 1 for lv in cs}
    sys.stderr.write(f"poll {pollgap} chk {chk}\n")
    jobs = []
    def lvl(kp): return 1 if kp < 4 else 2 if kp < 8 else 3 if kp < 12 else 4
    for f in E1: jobs.append((f, chk[lvl(f[1])], first_h[f] - a.hmin))
    for f in E2: jobs.append((f, max(chk[lvl(f[1])], 36*17), first_h[f] - a.hmin))
    for f in LT: jobs.append((f, max(chk[4], 36*18), first_h[f] - a.hmin))
    slots = []
    for st_ in range(6, 26):
        q = a.hq0 if st_ < 13 else a.hq1 if st_ < 17 else a.hq2
        slots += [36*st_ + 19 + (17*t)//q for t in range(q)]
    used = set(); sched = {}
    for f, e_, d_ in jobs:
        cand = [x for x in slots if x >= e_ and x not in used]
        assert cand and cand[0] <= d_, ("cannot schedule h load", f, e_, d_, cand[:1])
        used.add(cand[0]); sched[f] = cand[0]
    order_ = sorted(sched.items(), key=lambda kv: kv[1])
    place_loads([f for f, _ in order_], [x for _, x in order_])
    sys.stderr.write("h loads per stage: " + str({st_: sum(1 for x in sched.values() if x//36 == st_) for st_ in range(6, 26)}) + "\n")
    R8 = 32; S8 = 64
    g8l = chk[5]
    for e_ in range(4):
        addi(g8l + e_, f"s_add_u32 s{sSl}, s{sR8l}, {e_*4096}")
        addv(g8l + e_, f"buffer_load_dwordx4 v[{R8+4*e_}:{R8+4*e_+3}], v{vR8}, s[{sP}:{sP+3}], s{sSl} offen sc1", ("r8", e_))
    def sum_items(R, Sm, nsrc, tagf):
        items = []
        for e_ in range(nsrc):
            items.append(("w", tagf(e_)))
            for n_ in range(4):
                r = R + 4*e_ + n_
                if e_ == 0:
                    items.append(("v", f"v_lshlrev_b32 v{Sm+2*n_}, 16, v{r}"))
                    items.append(("v", f"v_and_b32 v{Sm+2*n_+1}, 0xffff0000, v{r}"))
                else:
                    items.append(("v", f"v_lshlrev_b32 v{Sm+8}, 16, v{r}"))
                    items.append(("v", f"v_and_b32 v{Sm+9}, 0xffff0000, v{r}"))
                    items.append(("v", f"v_add_f32 v{Sm+2*n_}, v{Sm+2*n_}, v{Sm+8}"))
                    items.append(("v", f"v_add_f32 v{Sm+2*n_+1}, v{Sm+2*n_+1}, v{Sm+9}"))
        return items
    it8 = sum_items(R8, S8, 4, lambda e_: ("r8", e_))
    it8 += [("v", "v_nop"), ("v", "v_nop")]
    for n_ in range(4): it8.append(("v", f"v_permlane32_swap_b32 v{S8+n_}, v{S8+4+n_}"))
    for n_ in range(4): it8.append(("v", f"v_add_f32 v{S8+n_}, v{S8+n_}, v{S8+4+n_}"))
    it8 += [("v", "v_nop"), ("v", "v_nop")]
    for n_ in range(2): it8.append(("v", f"v_permlane16_swap_b32 v{S8+n_}, v{S8+2+n_}"))
    for n_ in range(2): it8.append(("v", f"v_add_f32 v{S8+n_}, v{S8+n_}, v{S8+2+n_}"))
    it8.append(("v", f"v_cvt_pk_bf16_f32 v{S8+4}, v{S8}, v{S8+1}"))
    it8.append(("st", f"buffer_store_dword v{S8+4}, v{vO8}, s[{sO}:{sO+3}], s{sO8} offen"))
    g8 = g8l + 30
    job8_end = g8 + len(it8)//a.j8per + 1
    for n_, (k, x) in enumerate(it8):
        gp = g8 + n_//a.j8per
        if k == "w": add(gp, (lambda x=x: g.wait_vm(x)))
        elif k == "st": addv(gp, x, "out8")
        else: addi(gp, x)

    RA = 32; AO = accof["Y"][1]
    def ra_loads(track=True):
        for k in range(3):
            g.e(f"s_add_u32 s{sT0}, s{s_q}, {k+1}")
            g.e(f"s_and_b32 s{sT0}, s{sT0}, 3")
            g.e(f"s_lshl_b32 s{sT0}, s{sT0}, 13")
            g.e(f"s_add_u32 s{sSl}, s{sRAl}, s{sT0}")
            for hf in range(2):
                r = RA + 8*k + 4*hf
                ins = f"buffer_load_dwordx4 v[{r}:{r+3}], v{vL16}, s[{sP}:{sP+3}], s{sSl} offen offset:{hf*1024} sc1"
                if track: g.vmem(ins, ("ra", k, hf))
                else: g.e(ins)
    def reads(n_):
        s, acc, bv, i0, i1, Bo, first, xd, dep = mf[n_]
        fr = FR + 4*(n_ % 8)
        if a.noread and n_ >= 8:
            g.lg.append(("A", n_)); g.lg.append(("A", n_)); g.ldone = len(g.lg) - 1
            return
        g.lds(f"ds_read_b64_tr_b16 a[{fr}:{fr+1}], v{bv} offset:{i0}", ("A", n_))
        g.lds(f"ds_read_b64_tr_b16 a[{fr+2}:{fr+3}], v{bv} offset:{i1}", ("A", n_))
    maxgap = max(fill.keys())
    WG = a.wgrp
    for n_ in range(-LA, NM):
        if n_ >= 36 and n_ % 36 == 0 and (n_//36) in windows:
            for fn in pre_F.get(n_, []): fn()
            if n_ not in bgaps:
                for fn in pre_bar.get(n_, []): fn()
            if not a.nofbar: g.e("s_barrier")
        if a.sent and n_ == NM - a.ldearly:
            ra_loads()
        if (not a.sent) and n_ == NM - a.fing:
            g.wait_vm(("pst", "F"))
            g.e("s_barrier")
            if not a.nofix: stamp("pub")
            if not a.nocheck: publish(FINAL)
        if (not a.sent) and a.apoll and n_ == NM - a.apoll and not a.nocheck:
            poll(FINAL)
        if n_ in bgaps:
            s = bgaps[n_]
            g.wait_vm(("W", s))
            for lv, req in pub_req.items():
                if lv not in published and all(g.has(t) and issue_gap[t] + a.stlat <= n_ for t in req):
                    g.wait_vm(*req)
            for fn in pre_bar.get(n_, []): fn()
            g.e("s_barrier")
            if s in a.stlist: stamp(f"B{s}")
            for lv, req in pub_req.items():
                if lv not in published and all(g.has(t) and g.vm_done(t) for t in req):
                    published[lv] = s
                    g.c(f"publish level {lv} at B{s}")
                    if not a.nocheck: publish(lv)
        if a.sleepgap == n_:
            for _ in range(a.sleepn): g.e("s_sleep 8")
        for fn in fill.get(n_, []): fn()
        if n_ + LA < NM: reads(n_ + LA)
        if 0 <= n_ < NM:
            s, acc, bv, i0, i1, Bo, first, xd, dep = mf[n_]
            if n_ % WG == 0:
                hi = min(n_ + WG - 1, NM - 1)
                for m_ in range(n_, hi + 1):
                    if mf[m_][8] is not None: g.wait_vm(mf[m_][8])
                for m_ in range(n_, hi + 1):
                    if mf[m_][7] is not None: g.wait_lg(mf[m_][7])
                g.wait_lg(("A", hi))
            fr = FR + 4*(n_ % 8)
            C = "0" if first else f"v[{acc}:{acc+15}]"
            g.e(f"v_mfma_f32_32x32x16_bf16 v[{acc}:{acc+15}], a[{fr}:{fr+3}], {Bo}, {C}")
    sys.stderr.write(f"published: {published}\n")
    if not a.nocheck:
        for lv in cs: assert published[lv] <= cs[lv], f"poll {lv} placed before own publish"
    for n_ in range(NM, maxgap+1):
        for fn in fill.get(n_, []): fn()
    fill.clear()
    if not a.nofix: stamp("mfma_end")
    if a.sent:
        assert job8_end < NM - a.ldearly, (job8_end, NM)
        g.e(f"s_mov_b32 s{sSpin}, 0")
        g.lab("SENT_CHECK")
        g.e("s_waitcnt vmcnt(0)")
        g.vdone = len(g.vm) - 1
        for z in range(6):
            r = RA + 4*z
            g.e(f"v_max3_u32 v{64+z}, v{r}, v{r+1}, v{r+2}")
            g.e(f"v_max_u32 v{64+z}, v{64+z}, v{r+3}")
        g.e("v_max3_u32 v64, v64, v65, v66")
        g.e("v_max3_u32 v67, v67, v68, v69")
        g.e("v_max_u32 v64, v64, v67")
        g.e(f"v_cmp_eq_u32 s[{sCm}:{sCm+1}], -1, v64")
        g.e("s_nop 1")
        g.e(f"s_cmp_eq_u64 s[{sCm}:{sCm+1}], 0")
        g.e("s_cbranch_scc1 SENT_GO")
        g.e(f"s_add_u32 s{sSpin}, s{sSpin}, 1")
        g.e(f"s_cmp_ge_u32 s{sSpin}, {a.spinmax}")
        g.e("s_cbranch_scc1 SENT_GO")
        ra_loads(track=False)
        g.e("s_branch SENT_CHECK")
        g.lab("SENT_GO")
        if not a.nofix: stamp("go")
    else:
        assert eY < NM - a.fing, (eY, NM)
        if not a.nocheck:
            def fin():
                g.e(f"s_mov_b32 s{sSpin}, 0")
                if a.apoll:
                    g.e("s_waitcnt vmcnt(0)")
                    check_regs(FINAL)
                    g.e("s_cbranch_scc1 FINAL_GO")
                if a.cntslow:
                    g.e(f"v_mov_b32 v{POLL+4}, 1")
                    g.e("s_mov_b64 exec, 1")
                    g.e(f"s_movk_i32 s{sTl}, {32+4*6}")
                    g.e(f"buffer_atomic_add v{POLL+4}, off, s[{sG}:{sG+3}], s{sTl}")
                    g.e("s_mov_b64 exec, -1")
                g.lab("FINAL_LOOP")
                g.e(poll_ins(FINAL))
                g.e("s_waitcnt vmcnt(0)")
                check_regs(FINAL)
                g.e("s_cbranch_scc1 FINAL_GO")
                g.e(f"s_add_u32 s{sSpin}, s{sSpin}, 1")
                g.e(f"s_cmp_lt_u32 s{sSpin}, {a.spinmax}")
                g.e("s_cbranch_scc1 FINAL_LOOP")
                g.lab("FINAL_GO")
            w0(fin)
            g.e("s_barrier")
        else:
            g.e("s_nop 7"); g.e("s_nop 7")
        if not a.nofix: stamp("go")
        ra_loads()
        g.e("s_nop 7"); g.e("s_nop 3")
    for k in range(3):
        for hf in range(2):
            g.wait_vm(("ra", k, hf))
            for n_ in range(4):
                r = RA + 8*k + 4*hf + n_
                g.e(f"v_lshlrev_b32 v64, 16, v{r}")
                g.e(f"v_and_b32 v65, 0xffff0000, v{r}")
                g.e(f"v_add_f32 v{AO+8*hf+2*n_}, v{AO+8*hf+2*n_}, v64")
                g.e(f"v_add_f32 v{AO+8*hf+2*n_+1}, v{AO+8*hf+2*n_+1}, v65")
    for hf in range(2):
        o_ = 68 + 4*hf
        for n_ in range(4): g.e(f"v_cvt_pk_bf16_f32 v{o_+n_}, v{AO+8*hf+2*n_}, v{AO+8*hf+2*n_+1}")
        g.e("s_nop 1")
        g.e(f"v_permlane32_swap_b32 v{o_}, v{o_+2}")
        g.e(f"v_permlane32_swap_b32 v{o_+1}, v{o_+3}")
        g.e(f"s_add_u32 s{sSt}, s{sOA}, {hf*32}")
        g.vmem(f"buffer_store_dwordx4 v[{o_}:{o_+3}], v{vO}, s[{sO}:{sO+3}], s{sSt} offen {a.outflag}", ("out", hf))
    if a.stamps:
        g.e("s_waitcnt vmcnt(0)")
        g.e(f"s_memrealtime s[12:13]")
        g.e(f"s_memtime s[14:15]")
        g.e("s_waitcnt lgkmcnt(0)")
        g.e(f"s_cmp_lg_u32 s{s_w}, 0")
        g.e("s_cbranch_scc1 K1_END")
        g.e(f"s_add_u32 s8, s{sWS}, {STAMP_OFF}")
        g.e(f"s_addc_u32 s9, s{sWS+1}, 0")
        g.e(f"s_lshl_b32 s10, s2, 7")
        g.e("s_add_u32 s8, s8, s10")
        g.e("s_addc_u32 s9, s9, 0")
        order = [4, 12, 6, 14] + ([0] if a.prostamp else []) + [stamp_regs[k][0] for k in range(len(stamp_used))]
        g.e("v_mov_b32 v1, 0")
        for n_, r in enumerate(order):
            g.e(f"v_mov_b32 v2, s{r}")
            g.e(f"v_mov_b32 v3, s{r+1}")
            g.e(f"global_store_dwordx2 v1, v[2:3], s[8:9] offset:{n_*8}")
            g.e("s_nop 1")
        g.e("v_mov_b32 v2, 0"); g.e("v_mov_b32 v3, 0")
        for n_ in range(len(order), 16):
            g.e(f"global_store_dwordx2 v1, v[2:3], s[8:9] offset:{n_*8}")
        sys.stderr.write("stamps: " + " ".join(stamp_used) + "\n")
    g.lab("K1_END")
    g.e("s_endpgm")
    for lv in slow:
        g.lab(f"SLOW{lv}")
        if a.cntslow:
            g.e(f"v_mov_b32 v{POLL+4}, 1")
            g.e("s_mov_b64 exec, 1")
            g.e(f"s_movk_i32 s{sSpin}, {32+4*lv}")
            g.e(f"buffer_atomic_add v{POLL+4}, off, s[{sG}:{sG+3}], s{sSpin}")
            g.e("s_mov_b64 exec, -1")
        g.e(f"s_mov_b32 s{sSpin}, 0")
        g.lab(f"SLOWL{lv}")
        g.e("s_sleep 1")
        g.e(poll_ins(lv))
        g.e("s_waitcnt vmcnt(0)")
        check_regs(lv)
        g.e(f"s_cbranch_scc1 OK{lv}")
        g.e(f"s_add_u32 s{sSpin}, s{sSpin}, 1")
        g.e(f"s_cmp_lt_u32 s{sSpin}, {a.spinmax}")
        g.e(f"s_cbranch_scc1 SLOWL{lv}")
        g.e(f"s_branch OK{lv}")
    g.lab("CODE_END")
    return g.text()

def kd(name, vg, acc, sg):
    return f""".p2align 6
.amdhsa_kernel {name}
  .amdhsa_next_free_vgpr {vg}
  .amdhsa_next_free_sgpr {sg}
  .amdhsa_accum_offset {acc}
  .amdhsa_group_segment_fixed_size 0
  .amdhsa_kernarg_size 56
  .amdhsa_user_sgpr_count 2
  .amdhsa_user_sgpr_kernarg_segment_ptr 1
  .amdhsa_system_sgpr_workgroup_id_x 1
.end_amdhsa_kernel
"""
def main():
    p = argparse.ArgumentParser()
    p.add_argument("-o", default="standalone__glu_gated_reglu__prompt.s")
    for nm, dv in (("la", 7), ("vpg", 1), ("dstep", 2), ("stamps", 0), ("spinmax", 200000), ("nocheck", 0), ("nofix", 0),
                   ("pf", 1), ("pd", 6), ("pfgap", 19), ("pfd", 6), ("c1s", 16), ("hper", 7), ("c2s", 17), ("c3s", 21), ("c4s", 23),
                   ("p8gap", 19), ("rtt", 24), ("cntslow", 0), ("skew", 0), ("skewmask", 15), ("skewval", 5), ("apoll", 0), ("x1gap", 4), ("noread", 0), ("nodma", 0), ("nohx", 0), ("hq0", 3), ("dsteph", 3), ("dstep2", 2), ("sleepgap", -1000), ("sleepn", 4), ("sent", 1), ("clrgap", 33), ("clr0", 6), ("clrstep", 36), ("ldearly", 6), ("j8per", 2), ("own", 54), ("fing", 12), ("cpf", 1), ("hq1", 4), ("hq2", 5), ("pre", 1), ("polld", 1), ("hmin", 16), ("lper", 7), ("farT", 15), ("far0", 2), ("pfalt", 1), ("pfearly", 1), ("pfprobe", -1), ("cad", 2), ("noepi", 0), ("nofbar", 0), ("stlat", 38), ("hs0", 12), ("pf0", 2), ("pfrate", 1), ("x3gap", 62), ("prostamp", 0), ("dbgtime", 0), ("wgrp", 4), ("x2gap", 20)):
        p.add_argument("--" + nm, type=int, default=dv)
    p.add_argument("--pfflag", default="")
    p.add_argument("--pfdflag", default="")
    p.add_argument("--pdl", default="44,44,44,44,44")
    p.add_argument("--outflag", default="")
    p.add_argument("--wflag", default="")
    p.add_argument("--xflag", default="")
    p.add_argument("--stflag", default="sc1")
    p.add_argument("--ldflag", default="sc1")
    p.add_argument("--stlist", default="1,16,18,21,25")
    a = p.parse_args()
    a.stlist = [int(x) for x in a.stlist.split(",")]
    out = f"""; ReGLU MLP, fused in one persistent launch:  out = (relu(x Wg) * (x Wu)) Wd
; x (2048,576) bf16, Wg/Wu (576,4608) bf16, Wd (4608,576) bf16, out (2048,576) bf16.
; kernarg: 0 x, 8 W_gate, 16 W_up, 24 W_down, 32 out, 40 debug (256 B, zero at entry), 48 workspace.
;
; 256 workgroups (one per CU, 4 waves, 1 wave per SIMD, 512 registers per lane).
; Workgroup (i, j): i = 128-row tile of x, j = 288-wide slice of the hidden dimension; j = 4q + r.
; Phase 1: each wave keeps its 32 rows of x in registers (MFMA B operand); Wg/Wu stream through a
;          4-slot LDS ring (LDS-DMA) and are read transposed; h = relu(gate)*up stays in registers
;          (bf16, already in MFMA B-operand order) and is also published in the workspace.
; Phase 2: the 4 workgroups of a group (i, q) share their h: workgroup r computes output columns
;          [128 r, 128 r + 128) over the 1152 hidden units of the group, and columns [512, 576) over
;          its own 288 units.  Partial sums (bf16) are exchanged between the 4 groups q (and all 16
;          slices for the last 64 columns) and summed in fp32.
; Hand-offs: write-through stores, vmcnt wait, workgroup barrier, flag store; consumers poll the flag
;          (values are tagged with a per-launch token published through the debug buffer).
; Generated by the author's own script (software-pipelined schedule, one MFMA per issue gap).
; @launch grid=(256,1,1) block=(256,1,1) lds=163840
.amdgcn_target "amdgcn-amd-amdhsa--gfx950"
.text
.globl {KNAME}
.p2align 8
.type {KNAME},@function
""" + gen(a) + '.section .rodata,"a"\n' + kd(KNAME, 512, 256, 102)
    open(a.o, "w").write(out)
main()
```
